```python
import torch

def _softmax(x, axis=-1):
    return torch.softmax(x, dim=axis)
def _gelu(x):
    return torch.nn.functional.gelu(x, approximate="tanh")
def _silu(x):
    return torch.nn.functional.silu(x)
def _sigmoid(x):
    return torch.sigmoid(x)
def _layernorm(x, axis=-1, eps=1e-5):
    m = x.mean(dim=axis, keepdim=True)
    v = x.var(dim=axis, keepdim=True, unbiased=False)
    return (x - m) / torch.sqrt(v + eps)
def _scatter_add(tgt, idx, src, axis=0):
    return tgt.clone().index_add_(axis, idx, src)
def _segment_sum(src, seg, n):
    out = torch.zeros((n,) + src.shape[1:], dtype=src.dtype)
    return out.index_add_(0, seg, src)
def _pad(x, pw):
    flat = tuple(v for pair in reversed(pw) for v in pair)
    return torch.nn.functional.pad(x, flat)

kernel_name = 'sequential_preLN__ssm_conv_s4__dense_activation_relu__prompt'

def setup_inputs():

    _w = (lambda a: (lambda t: t.to(torch.bfloat16) if t.is_floating_point() else t)(torch.as_tensor(a)))
    def _A_setup():
        B, L, D, N = 1, 2048, 640, 128
        A_re = -(lambda _x: torch.exp(torch.as_tensor(_x)))((lambda *s: torch.randn(*s, dtype=torch.bfloat16) * 3.2)(D, N))
        A_im = torch.pi * (lambda *s: torch.randn(*s, dtype=torch.bfloat16) * 0.05)(D, N)
        B_re = (lambda *s: torch.randn(*s, dtype=torch.bfloat16) * 0.1)(D, N)
        B_im = (lambda *s: torch.randn(*s, dtype=torch.bfloat16) * 0.1)(D, N)
        C_re = (lambda *s: torch.randn(*s, dtype=torch.bfloat16) * 0.1)(D, N)
        C_im = (lambda *s: torch.randn(*s, dtype=torch.bfloat16) * 0.1)(D, N)
        log_dt = (lambda *s: torch.randn(*s, dtype=torch.bfloat16) * 0.05)(D) * 0.5 - 4.0
        Dskip = (lambda *s: torch.randn(*s, dtype=torch.bfloat16) * 0.05)(D)
        return {
            "u": _w((lambda *s: torch.randn(*s, dtype=torch.bfloat16) * 0.05)(B, L, D)),
            "A_re": _w(A_re),
            "A_im": _w(A_im),
            "B_re": _w(B_re),
            "B_im": _w(B_im),
            "C_re": _w(C_re),
            "C_im": _w(C_im),
            "log_dt": _w(log_dt),
            "Dskip": _w(Dskip),
        }
    _A_in = _A_setup()

    def _B_setup():
        B, S, D, Dff = 1, 2048, 640, 1728
        return {
            "x": _w((lambda *s: torch.randn(*s, dtype=torch.bfloat16) * 0.05)(B, S, D)),
            "w1": _w((lambda *s: torch.randn(*s, dtype=torch.bfloat16) * 0.05)(D, Dff)),
            "w2": _w((lambda *s: torch.randn(*s, dtype=torch.bfloat16) * 0.05)(Dff, D)),
        }
    _B_in = _B_setup()

    return {
        "A_u": _A_in["u"],
        "A_A_re": _A_in["A_re"],
        "A_A_im": _A_in["A_im"],
        "A_B_re": _A_in["B_re"],
        "A_B_im": _A_in["B_im"],
        "A_C_re": _A_in["C_re"],
        "A_C_im": _A_in["C_im"],
        "A_log_dt": _A_in["log_dt"],
        "A_Dskip": _A_in["Dskip"],
        "B_x": _B_in["x"],
        "B_w1": _B_in["w1"],
        "B_w2": _B_in["w2"],
    }

def reference(A_u, A_A_re, A_A_im, A_B_re, A_B_im, A_C_re, A_C_im, A_log_dt, A_Dskip, B_x, B_w1, B_w2):
    def _A_ref(u, A_re, A_im, B_re, B_im, C_re, C_im, log_dt, Dskip):
        Bsz, L, D = u.shape
        dt = torch.exp(log_dt)[:, None]
        A = A_re + 1j * A_im
        Bc = B_re + 1j * B_im
        Cc = C_re + 1j * C_im
        logdA = dt * A
        dB = dt * Bc
        l = (lambda x, dt: x.to(dt))(torch.arange(L), A_re.dtype)
        P = torch.exp(logdA[:, :, None] * l[None, None, :])
        K = torch.einsum("dn,dnl,dn->dl", Cc, P, dB).real
        L2 = 2 * L
        Kp = _pad(K, ((0, 0), (0, L)))
        up = (lambda x, *d: x.permute(*d))(u, 0, 2, 1)
        up = _pad(up, ((0, 0), (0, 0), (0, L)))
        Kf = (lambda x, axes=(-2,-1): torch.fft.rfft2(x.float(), dim=axes))(Kp[:, None, :], axes=(-2, -1))
        Uf = (lambda x, axes=(-2,-1): torch.fft.rfft2(x.float(), dim=axes))(up[:, :, None, :], axes=(-2, -1))
        Yf = Uf * Kf[None, :, :, :]
        y = (lambda x, s, axes=(-2,-1): torch.fft.irfft2(x, s=s, dim=axes).to(torch.bfloat16))(Yf, (1, L2), axes=(-2, -1))[:, :, 0, :L]
        y = (lambda x, *d: x.permute(*d))(y, 0, 2, 1) + u * Dskip[None, None, :]
        return y

    def _B_ref(x, w1, w2):
        h = torch.einsum("bsd,df->bsf", x, w1)
        zero = torch.zeros_like(h)
        h = torch.maximum(h, zero)
        return torch.einsum("bsf,fd->bsd", h, w2)

    x = A_u
    h = x + _A_ref(_layernorm(x, axis=-1), A_A_re, A_A_im, A_B_re, A_B_im, A_C_re, A_C_im, A_log_dt, A_Dskip)
    h2 = h + _B_ref(_layernorm(h, axis=-1), B_w1, B_w2)
    return h2
```

```python
import re

TRANS = ("v_exp_f32", "v_log_f32", "v_rcp_f32", "v_rsq_f32", "v_sqrt_f32", "v_sin_f32", "v_cos_f32", "v_rcp_iflag_f32")
RMW_DST = ("v_fmac_", "v_dot2c_", "v_pk_fmac", "v_mac_", "v_dot4c", "v_writelane")

def regs_of(tok):
    tok = tok.strip()
    tok = re.sub(r"^-", "", tok)
    m = re.match(r"^abs\((.*)\)$", tok) or re.match(r"^\|(.*)\|$", tok)
    if m: tok = m.group(1)
    m = re.match(r"^([vas])(\d+)$", tok)
    if m: return {(m.group(1), int(m.group(2)))}
    m = re.match(r"^([vas])\[(\d+):(\d+)\]$", tok)
    if m: return {(m.group(1), i) for i in range(int(m.group(2)), int(m.group(3)) + 1)}
    if tok == "vcc": return {("s", 106), ("s", 107)}
    if tok == "vcc_lo": return {("s", 106)}
    if tok == "vcc_hi": return {("s", 107)}
    if tok == "m0": return {("s", 124)}
    if tok == "exec": return {("s", 126), ("s", 127)}
    return set()

class Ins:
    def __init__(self, text):
        self.text = text
        t = text.split(";")[0].strip()
        self.op = t.split()[0] if t else ""
        rest = t[len(self.op):].strip()
        ops = [o.strip() for o in re.split(r",(?![^\[]*\])", rest)] if rest else []
        self.mods = ""
        if ops:
            parts = ops[-1].split(None, 1)
            ops[-1] = parts[0]
            if len(parts) > 1: self.mods = parts[1]
        self.ops = ops
        op = self.op
        self.is_mfma = op.startswith("v_mfma") or op.startswith("v_smfmac")
        self.is_valu = op.startswith("v_") and not self.is_mfma
        self.is_ds = op.startswith("ds_")
        self.is_vmem = op.startswith(("buffer_", "global_", "flat_"))
        self.is_salu = op.startswith("s_")
        self.is_trans = op.replace("_e32", "").replace("_e64", "") in TRANS
        self.is_dot = op.startswith("v_dot")
        self.is_dpp = "_dpp" in op or "row_" in self.mods or "quad_perm" in self.mods or "wave_" in self.mods
        self.is_perml = op.startswith("v_permlane")
        self.is_rdlane = op.startswith(("v_readlane", "v_readfirstlane"))
        self.w = set(); self.r = set(); self.srcC = set(); self.srcAB = set(); self.stdata = set()
        R = [regs_of(o) for o in ops]
        if self.is_mfma:
            self.w = R[0]; self.srcAB = R[1] | R[2]; self.srcC = R[3]; self.r = self.srcAB | self.srcC
            self.passes = 8 if "32x32x16" in op else 4 if "16x16x32" in op else 16
        elif self.is_valu:
            if op.startswith(("v_swap", "v_permlane16_swap", "v_permlane32_swap")):
                self.w = R[0] | R[1]; self.r = R[0] | R[1]
            elif op.startswith("v_nop"):
                pass
            else:
                self.w = set(R[0]); k = 1
                if re.match(r"v_(add|sub|subrev|addc|subb)_co_", op) or op.startswith(("v_div_scale", "v_mad_u64")):
                    self.w |= R[1]; k = 2
                for x in R[k:]: self.r |= x
                if op.startswith(RMW_DST) or "_dpp" in op or "sdwa" in op: self.r |= R[0]
                if op.startswith("v_cmpx"): self.w |= regs_of("exec")
        elif self.is_ds:
            if op.startswith(("ds_read", "ds_bpermute", "ds_permute", "ds_swizzle")):
                self.w = R[0]
                for x in R[1:]: self.r |= x
            else:
                for x in R: self.r |= x
        elif self.is_vmem:
            lds = " lds" in (" " + self.mods) or "_lds_" in op
            self.is_ldsdma = lds
            if "load" in op and not lds:
                self.w = R[0]
                for x in R[1:]: self.r |= x
                if "d16" in op: self.r |= R[0]
            elif "atomic" in op and "sc0" in self.mods and op.startswith("global"):
                self.w = R[0]
                for x in R[1:]: self.r |= x
            else:
                for x in R: self.r |= x
                if lds: self.r |= regs_of("m0")
                if "store" in op and op.endswith(("x3", "x4")):
                    self.stdata = R[0] if op.startswith("buffer") else R[1]
        elif self.is_salu:
            if op.startswith(("s_cmp", "s_cbranch", "s_branch", "s_waitcnt", "s_nop", "s_barrier", "s_endpgm", "s_setprio", "s_sleep", "s_bitcmp")):
                for x in R: self.r |= x
            else:
                if R: self.w = set(R[0])
                for x in R[1:]: self.r |= x
                if "saveexec" in op: self.w |= regs_of("exec")
    def states(self):
        if self.op == "s_nop": return int(self.ops[0], 0) + 1
        return 1

def need(p, c):
    n = 0
    vw = {x for x in p.w if x[0] in "va"}; sw = {x for x in p.w if x[0] == "s"}
    if p.is_valu:
        if sw & c.r:
            if c.is_vmem: n = max(n, 5)
            if c.is_valu: n = max(n, 4 if c.op.startswith(("v_readlane", "v_writelane")) else 2)
        if vw & c.r:
            if c.is_dpp or c.is_perml: n = max(n, 2)
            if c.is_rdlane: n = max(n, 1)
            if c.is_mfma: n = max(n, 2)
            if p.is_trans and (c.is_valu and not c.is_trans): n = max(n, 1)
            if "sdwa" in p.op or "op_sel" in p.mods and not p.op.startswith("v_pk"): n = max(n, 1)
        if p.is_dot and (vw & (c.r | c.w)):
            same = c.op == p.op
            if same:
                srcab = set()
                for o in c.ops[1:3]: srcab |= regs_of(o)
                if vw & srcab: n = max(n, 3)
            else: n = max(n, 3)
        if ("s", 126) in p.w:
            if c.is_mfma: n = max(n, 4)
            if c.is_dpp: n = max(n, 5)
            if c.is_rdlane or c.is_perml: n = max(n, 4)
    if p.is_salu and ("s", 124) in p.w and c.is_vmem and getattr(c, "is_ldsdma", False): n = max(n, 1)
    if p.is_vmem and p.stdata and (p.stdata & c.w): n = max(n, 2 if c.is_valu else 1)
    if p.is_mfma:
        idx = {2: 0, 4: 1, 8: 2, 16: 3}[p.passes]
        if c.is_mfma:
            if p.w & c.srcAB: n = max(n, (5, 8, 12, 20)[idx])
            if p.w & c.srcC and not (p.w == c.srcC and p.passes == c.passes): n = max(n, (4, 6, 10, 18)[idx])
            if p.w & c.w and not (p.w == c.srcC): n = max(n, (4, 6, 10, 18)[idx])
        else:
            if p.w & (c.r | c.w): n = max(n, (5, 8, 12, 20)[idx])
            if c.is_valu and (p.srcC & c.w): n = max(n, (1, 3, 7, 15)[idx])
    return n

class B:
    def __init__(self):
        self.out = []; self.hist = []; self.nops = 0
    def raw(self, line): self.out.append(line)
    def label(self, name):
        self.out.append(name + ":")
    def fence(self, n=20):
        self("s_nop %d" % (min(n, 16) - 1))
    def __call__(self, text):
        for line in text.strip().split("\n"):
            line = line.strip()
            if not line or line.startswith(";"):
                if line: self.out.append("    " + line)
                continue
            if re.match(r"^[\w.$]+:$", line):
                self.out.append(line); continue
            c = Ins(line)
            dist = 0; req = 0
            for p in reversed(self.hist):
                k = need(p, c) - dist
                if k > req: req = k
                dist += p.states()
                if dist >= 24: break
            while req > 0:
                k = min(req, 16)
                nop = Ins("s_nop %d" % (k - 1)); self.hist.append(nop); self.out.append("    " + nop.text); self.nops += k
                req -= k
            self.hist.append(c); self.out.append("    " + line)
            if len(self.hist) > 64: self.hist = self.hist[-40:]
    def text(self): return "\n".join(self.out) + "\n"

def v(n, cnt=1): return f"v{n}" if cnt == 1 else f"v[{n}:{n+cnt-1}]"
def a(n, cnt=1): return f"a{n}" if cnt == 1 else f"a[{n}:{n+cnt-1}]"
def s(n, cnt=1): return f"s{n}" if cnt == 1 else f"s[{n}:{n+cnt-1}]"

def kernel(name, body, vgpr, sgpr=96, accum=None, agpr=0):
    accum = accum or (vgpr + 3) // 4 * 4
    nfv = accum + agpr if agpr else vgpr
    return f""".text
.globl {name}
.p2align 8
.type {name},@function
{name}:
{body}    s_endpgm
.section .rodata,"a"
.p2align 6
.amdhsa_kernel {name}
  .amdhsa_next_free_vgpr {nfv}
  .amdhsa_next_free_sgpr {sgpr}
  .amdhsa_accum_offset {accum}
  .amdhsa_group_segment_fixed_size 0
  .amdhsa_kernarg_size 120
  .amdhsa_user_sgpr_count 2
  .amdhsa_user_sgpr_kernarg_segment_ptr 1
  .amdhsa_system_sgpr_workgroup_id_x 1
.end_amdhsa_kernel
"""
```

```python
import sys, struct
sys.path.insert(0, "dev")
from asmb import *

NAME = "sequential_preLN__ssm_conv_s4__dense_activation_relu__prompt"
UX_OFF  = 0
GV_OFF  = UX_OFF + 512 * 640 * 16
H4_OFF  = GV_OFF + 640 * 2048
W1P_OFF = H4_OFF + 160 * 16384
W2P_OFF = W1P_OFF + 112 * 20480
CS_OFF  = W2P_OFF + 40 * 54 * 1024
H1F_OFF = CS_OFF + 5 * 8192
WS_END  = H1F_OFF + 128 * 54 * 1024
WS_BYTES = 0x10000000

def f2u(x): return struct.unpack("<I", struct.pack("<f", x))[0]
LOG2E = f2u(1.4426950408889634)
INV2PI = f2u(0.15915494309189535)

def srd(b, d, base, nbytes):
    b(f"s_mov_b32 s{d}, s{base}")
    b(f"s_and_b32 s{d+1}, s{base+1}, 0xffff")
    b(f"s_mov_b32 s{d+2}, {nbytes:#x}")
    b(f"s_mov_b32 s{d+3}, 0x20000")

def interleave(*lists):
    out = []; idx = [0] * len(lists); tot = sum(len(l) for l in lists)
    for _ in range(tot):
        best = min((k for k in range(len(lists)) if idx[k] < len(lists[k])), key=lambda k: (idx[k] + 0.5) / len(lists[k]))
        out.append(lists[best][idx[best]]); idx[best] += 1
    return out

def ln_stats(b, s1, s2, mb, rs, t0, t1):
    inv = f2u(1.0 / 640.0)
    b(f"v_mul_f32 v{t0}, {inv:#x}, v{s1}")
    b(f"v_mul_f32 v{t1}, {inv:#x}, v{s2}")
    b(f"v_fma_f32 v{t1}, -v{t0}, v{t0}, v{t1}")
    b(f"v_max_f32 v{t1}, 0, v{t1}")
    b(f"v_cvt_pk_bf16_f32 v{t0}, v{t0}, v{t1}")
    b(f"v_lshlrev_b32 v{mb}, 16, v{t0}")
    b(f"v_and_b32 v{t1}, 0xffff0000, v{t0}")
    b(f"v_add_f32 v{t1}, {f2u(1e-5):#x}, v{t1}")
    b(f"v_cvt_pk_bf16_f32 v{t1}, v{t1}, v{t1}")
    b(f"v_lshlrev_b32 v{t1}, 16, v{t1}")
    b(f"v_sqrt_f32 v{t1}, v{t1}")
    b(f"v_cvt_pk_bf16_f32 v{t1}, v{t1}, v{t1}")
    b(f"v_lshlrev_b32 v{t1}, 16, v{t1}")
    b(f"v_rcp_f32 v{rs}, v{t1}")

KG_ROW = 528
KG_LDS = 64 * KG_ROW
def slot_hi(vs, h):
    if vs <= 4: return 4 * h + vs
    if vs <= 7: return 256 + 4 * h + 2 * (vs - 5)
    if vs <= 10: return 512 + 256 * h + 4 * (vs - 8)
    if vs == 11: return None
    if vs <= 13: return 1024 + 512 * h + 8 * (vs - 12)
    return 1280 + 512 * h + 8 * (vs - 14)
XROWS = {}
for vs in range(16):
    for h in range(2):
        hi = slot_hi(vs, h)
        if hi is not None: XROWS.setdefault(hi, []).append(8 * (vs >> 2) + 4 * h + (vs & 3))

def gen_prep():
    b = B()
    b("s_cmp_ge_u32 s2, 256")
    b("s_cbranch_scc1 L_prep_end")
    b("s_load_dwordx16 s[8:23], s[0:1], 0")
    b("s_load_dwordx2 s[24:25], s[0:1], 64")
    b("s_load_dwordx2 s[26:27], s[0:1], 112")
    b("v_lshrrev_b32 v1, 6, v0")
    b("v_readfirstlane_b32 s3, v1")
    b("v_and_b32 v0, 63, v0")
    b("s_cmp_ge_u32 s3, 3")
    b("s_cbranch_scc1 L_ln")
    b("s_mul_i32 s28, s2, 3")
    b("s_add_u32 s28, s28, s3")
    b("s_cmp_ge_u32 s28, 640")
    b("s_cbranch_scc1 L_prep_end")
    b("s_lshl_b32 s29, s28, 8")
    b("v_lshl_add_u32 v1, v0, 2, s29")
    b("s_lshl_b32 s29, s28, 1")
    b("v_mov_b32 v2, s29")
    b("s_waitcnt lgkmcnt(0)")
    b("global_load_ushort v10, v2, s[22:23]")
    for k in range(6):
        b(f"global_load_dword v{4+k}, v1, s[{10+2*k}:{11+2*k}]")
    b("global_load_ushort v11, v2, s[24:25]")
    srd(b, 4, 26, WS_BYTES)
    b(f"s_mul_i32 s29, s3, {KG_LDS}")
    b("v_lshl_add_u32 v3, v0, 3, s29")
    b("v_and_b32 v60, 31, v0")
    b(f"v_mul_u32_u24 v60, {KG_ROW}, v60")
    b("v_lshrrev_b32 v61, 5, v0")
    b("v_lshl_add_u32 v60, v61, 4, v60")
    b("v_add_u32 v60, s29, v60")
    b(f"s_mov_b32 s30, {LOG2E:#x}")
    b(f"s_mov_b32 s31, {LOG2E:#x}")
    b(f"s_mov_b32 s32, {INV2PI:#x}")
    b(f"s_mov_b32 s33, {INV2PI:#x}")
    b("s_waitcnt vmcnt(7)")
    b("v_lshlrev_b32 v10, 16, v10")
    b("v_mul_f32 v10, s30, v10")
    b("v_exp_f32 v10, v10")
    b("v_cvt_pk_bf16_f32 v10, v10, v10")
    b("v_lshlrev_b32 v62, 16, v10")
    b("v_lshlrev_b32 v63, 16, v10")
    def unpack(dst, src):
        b(f"v_lshlrev_b32 v{dst}, 16, v{src}")
        b(f"v_and_b32 v{dst+1}, 0xffff0000, v{src}")
    A2, B2, CB = 12, 14, 16
    W1, W2, W4, W8, E256, E512, E1024 = 20, 24, 28, 32, 36, 40, 44
    b("s_waitcnt vmcnt(5)")
    unpack(A2, 4); unpack(B2, 5)
    b(f"v_pk_mul_f32 v[{A2}:{A2+1}], v[{A2}:{A2+1}], v[62:63]")
    b(f"v_pk_mul_f32 v[{B2}:{B2+1}], v[{B2}:{B2+1}], v[62:63]")
    b(f"v_pk_mul_f32 v[{A2}:{A2+1}], v[{A2}:{A2+1}], s[30:31]")
    b(f"v_pk_mul_f32 v[{B2}:{B2+1}], v[{B2}:{B2+1}], s[32:33]")
    def cexp(dst, m, t):
        mm = f2u(float(m))
        for e in range(2):
            if m == 1:
                b(f"v_exp_f32 v{t+e}, v{A2+e}")
                b(f"v_fract_f32 v{t+2+e}, v{B2+e}")
            else:
                b(f"v_mul_f32 v{t+e}, {mm:#x}, v{A2+e}")
                b(f"v_mul_f32 v{t+2+e}, {mm:#x}, v{B2+e}")
                b(f"v_exp_f32 v{t+e}, v{t+e}")
                b(f"v_fract_f32 v{t+2+e}, v{t+2+e}")
        for e in range(2):
            b(f"v_cos_f32 v{t+4+e}, v{t+2+e}")
            b(f"v_sin_f32 v{t+2+e}, v{t+2+e}")
        b(f"v_pk_mul_f32 v[{dst}:{dst+1}], v[{t}:{t+1}], v[{t+4}:{t+5}]")
        b(f"v_pk_mul_f32 v[{dst+2}:{dst+3}], v[{t}:{t+1}], v[{t+2}:{t+3}]")
    def cmul(dst, q, w, t):
        return [
            f"v_pk_mul_f32 v[{t}:{t+1}], v[{q}:{q+1}], v[{w}:{w+1}]",
            f"v_pk_mul_f32 v[{t+2}:{t+3}], v[{q}:{q+1}], v[{w+2}:{w+3}]",
            f"v_pk_fma_f32 v[{dst}:{dst+1}], v[{q+2}:{q+3}], v[{w+2}:{w+3}], v[{t}:{t+1}] neg_lo:[1,0,0] neg_hi:[1,0,0]",
            f"v_pk_fma_f32 v[{dst+2}:{dst+3}], v[{q+2}:{q+3}], v[{w}:{w+1}], v[{t+2}:{t+3}]",
        ]
    cexp(W8, 8, 48); cexp(W1, 1, 54); cexp(E256, 256, 48); cexp(E1024, 1024, 54)
    b("s_waitcnt vmcnt(1)")
    unpack(48, 6); unpack(50, 7); unpack(52, 8); unpack(54, 9)
    b("v_pk_mul_f32 v[48:49], v[48:49], v[62:63]")
    b("v_pk_mul_f32 v[50:51], v[50:51], v[62:63]")
    for i in cmul(CB, 52, 48, 56): b(i)
    for i in cmul(W2, W1, W1, 48): b(i)
    for i in cmul(E512, E256, E256, 52): b(i)
    for i in cmul(W4, W2, W2, 48): b(i)
    def emit(P, rows, neg, o):
        n = "-" if neg else ""
        r = [f"v_cvt_pk_bf16_f32 v{o}, v{P}, v{P+1}", f"v_cvt_pk_bf16_f32 v{o+1}, {n}v{P+2}, {n}v{P+3}"]
        for row in rows: r.append(f"ds_write_b64 v3, v[{o}:{o+1}] offset:{row*KG_ROW}")
        return r
    Y = ["v_mov_b32 v72, 0x3f803f80", "v_mov_b32 v73, 0", f"ds_write_b64 v3, v[72:73] offset:{32*KG_ROW}"]
    Y += emit(W8, [33], False, 74)
    cur = W8
    for j in range(2, 32):
        Y += cmul(64, cur, W8, 68); cur = 64
        Y += emit(64, [32 + j], False, 72 + 2 * (j & 1))
    X = []; cnt = [0]
    def xe(P, hi):
        o = 88 + 2 * (cnt[0] & 1); cnt[0] += 1
        return emit(P, XROWS[hi], True, o)
    X += xe(CB, 0)
    cur = CB
    for k in range(1, 9):
        X += cmul(76, cur, W1, 84); cur = 76; X += xe(76, k)
    X += cmul(76, CB, E256, 84); X += xe(76, 256)
    for k in range(1, 5):
        X += cmul(76, 76, W2, 84); X += xe(76, 256 + 2 * k)
    X += cmul(80, CB, E512, 84); X += xe(80, 512)
    X += cmul(76, 80, W4, 84); X += xe(76, 516)
    X += cmul(76, 76, W4, 84); X += xe(76, 520)
    X += cmul(80, 80, E256, 84); X += xe(80, 768)
    X += cmul(76, 80, W4, 84); X += xe(76, 772)
    X += cmul(76, 76, W4, 84); X += xe(76, 776)
    X += cmul(80, CB, E1024, 84)
    for k in range(4):
        if k: X += cmul(80, 80, E256, 84)
        X += xe(80, 1024 + 256 * k)
        X += cmul(76, 80, W8, 84); X += xe(76, 1024 + 256 * k + 8)
    for i in interleave(Y, X): b(i)
    for s_ in range(16):
        b(f"ds_read_b128 v[{96+8*s_}:{99+8*s_}], v60 offset:{32*s_}")
        b(f"ds_read_b128 v[{100+8*s_}:{103+8*s_}], v60 offset:{32*KG_ROW+32*s_}")
        if s_ >= 4:
            k = s_ - 4
            b("s_waitcnt lgkmcnt(8)")
            b(f"v_mfma_f32_32x32x16_bf16 v[64:79], v[{96+8*k}:{99+8*k}], v[{100+8*k}:{103+8*k}], {'0' if k == 0 else 'v[64:79]'}")
    for k in range(12, 16):
        b(f"s_waitcnt lgkmcnt({2*(15-k)})")
        b(f"v_mfma_f32_32x32x16_bf16 v[64:79], v[{96+8*k}:{99+8*k}], v[{100+8*k}:{103+8*k}], v[64:79]")
    b("s_waitcnt vmcnt(0)")
    b("v_lshlrev_b32 v11, 16, v11")
    b("v_cmp_eq_u32 vcc, 0, v0")
    b("v_cndmask_b32 v11, 0, v11, vcc")
    b("v_lshlrev_b32 v2, 4, v0")
    b("s_lshl_b32 s29, s28, 11")
    b(f"s_add_u32 s29, s29, {GV_OFF}")
    b("v_add_f32 v64, v64, v11")
    for m in range(8):
        b(f"v_cvt_pk_bf16_f32 v{80+m}, v{64+2*m}, v{65+2*m}")
    b("buffer_store_dwordx4 v[80:83], v2, s[4:7], s29 offen")
    b("buffer_store_dwordx4 v[84:87], v2, s[4:7], s29 offen offset:1024")
    b("s_endpgm")
    b.label("L_ln")
    b("s_lshl_b32 s28, s2, 1")
    b("s_add_u32 s28, s28, s3")
    b("s_sub_u32 s28, s28, 3")
    b("v_lshrrev_b32 v1, 4, v0")
    b("v_and_b32 v2, 15, v0")
    b("s_mul_i32 s29, s28, 5120")
    b("v_mul_u32_u24 v3, 1280, v1")
    b("v_lshl_add_u32 v3, v2, 4, v3")
    b("v_add_u32 v3, s29, v3")
    b("s_waitcnt lgkmcnt(0)")
    XR = 8
    for i in range(5):
        b(f"global_load_dwordx4 v[{XR+4*i}:{XR+4*i+3}], v3, s[8:9] offset:{256*i}")
    srd(b, 4, 26, WS_BYTES)
    b("v_lshlrev_b32 v4, 7, v2")
    b("v_lshl_add_u32 v4, v1, 5, v4")
    b("s_mul_i32 s29, s28, 10240")
    b(f"s_add_u32 s29, s29, {UX_OFF}")
    b("s_mov_b32 s30, 0x05040100")
    b("s_mov_b32 s31, 0x07060302")
    for k in range(4): b(f"v_mov_b32 v{60+k}, 0")
    for i in range(5):
        b(f"s_waitcnt vmcnt({4-i})")
        for k in range(4):
            r = XR + 4 * i + k
            b(f"v_dot2c_f32_bf16 v{60+(k&1)}, 0x3f803f80, v{r}")
            b(f"v_dot2c_f32_bf16 v{62+(k&1)}, v{r}, v{r}")
    b("v_add_f32 v60, v60, v61")
    b("v_add_f32 v62, v62, v63")
    for sh in (8, 4, 2, 1):
        b(f"v_add_f32_dpp v60, v60, v60 row_ror:{sh} row_mask:0xf bank_mask:0xf")
        b(f"v_add_f32_dpp v62, v62, v62 row_ror:{sh} row_mask:0xf bank_mask:0xf")
    ln_stats(b, 60, 62, 64, 66, 68, 69)
    b("v_mov_b32 v65, v64")
    b("v_mov_b32 v67, v66")
    UR = 32
    for i in range(5):
        ins = [[], [], [], []]
        for k in range(4):
            r = XR + 4 * i + k; t = 72 + 2 * k; u = UR + 4 * i + k
            ins[k] = [f"v_lshlrev_b32 v{t}, 16, v{r}", f"v_and_b32 v{t+1}, 0xffff0000, v{r}",
                      f"v_pk_add_f32 v[{t}:{t+1}], v[{t}:{t+1}], v[64:65] neg_lo:[0,1] neg_hi:[0,1]",
                      f"v_cvt_pk_bf16_f32 v{u}, v{t}, v{t+1}",
                      f"v_lshlrev_b32 v{t}, 16, v{u}", f"v_and_b32 v{t+1}, 0xffff0000, v{u}",
                      f"v_pk_mul_f32 v[{t}:{t+1}], v[{t}:{t+1}], v[66:67]",
                      f"v_cvt_pk_bf16_f32 v{u}, v{t}, v{t+1}"]
        for step in range(8):
            for k in range(4): b(ins[k][step])
        for base in (XR + 4 * i, UR + 4 * i):
            b(f"v_permlane32_swap_b32 v{base}, v{base+2}")
            b(f"v_permlane32_swap_b32 v{base+1}, v{base+3}")
        for base in (XR + 4 * i, UR + 4 * i):
            b(f"v_permlane16_swap_b32 v{base}, v{base+1}")
            b(f"v_permlane16_swap_b32 v{base+2}, v{base+3}")
        o = 80 + 8 * (i & 1)
        for e, sel in ((0, "s30"), (1, "s31")):
            for q, base in ((0, UR + 4 * i), (2, XR + 4 * i)):
                b(f"v_perm_b32 v{o+4*e+q}, v{base+1}, v{base}, {sel}")
                b(f"v_perm_b32 v{o+4*e+q+1}, v{base+3}, v{base+2}, {sel}")
        off = 2048 * i
        if off >= 4096:
            if off % 4096 == 0: b("s_add_u32 s29, s29, 4096")
            off %= 4096
        b(f"buffer_store_dwordx4 v[{o}:{o+3}], v4, s[4:7], s29 offen offset:{off}")
        b(f"buffer_store_dwordx4 v[{o+4}:{o+7}], v4, s[4:7], s29 offen offset:{off+16}")
    b.label("L_prep_end")
    return kernel("prep_kernel", b.text(), vgpr=224)

CH = 17056; V1O = 4160; UPAD = 8320; UO = 8832; XO = 12928
def gen_conv():
    b = B()
    b("s_cmp_ge_u32 s2, 228")
    b("s_cbranch_scc1 L_conv_end")
    b("s_load_dwordx2 s[26:27], s[0:1], 112")
    b("s_load_dwordx4 s[20:23], s[0:1], 80")
    b("v_lshrrev_b32 v1, 6, v0")
    b("v_readfirstlane_b32 s3, v1")
    b("v_and_b32 v0, 63, v0")
    b("s_cmp_ge_u32 s2, 160")
    b("s_cbranch_scc1 L_pack")
    b("s_lshr_b32 s8, s2, 3")
    b("s_and_b32 s9, s2, 7")
    b("s_lshr_b32 s10, s8, 1")
    b("s_lshl_b32 s10, s10, 4")
    b("s_lshl_b32 s9, s9, 1")
    b("s_and_b32 s8, s8, 1")
    b("s_add_u32 s10, s10, s9")
    b("s_add_u32 s10, s10, s8")
    b("v_lshrrev_b32 v2, 2, v0")
    b("v_and_b32 v3, 3, v0")
    b("v_mul_u32_u24 v1, 10240, v2")
    b("v_lshl_add_u32 v1, v3, 4, v1")
    b("v_lshlrev_b32 v4, 4, v0")
    b(f"s_mul_i32 s8, s3, {128*10240}")
    b("s_lshl_b32 s9, s10, 6")
    b("s_add_u32 s8, s8, s9")
    b("s_lshl_b32 s9, s10, 2")
    b("s_add_u32 s9, s9, s3")
    b("s_lshl_b32 s9, s9, 11")
    b(f"s_add_u32 s9, s9, {GV_OFF}")
    b("s_waitcnt lgkmcnt(0)")
    srd(b, 4, 26, WS_BYTES)
    P = 48
    b(f"buffer_load_dwordx4 v[{P}:{P+3}], v4, s[4:7], s9 offen")
    b(f"buffer_load_dwordx4 v[{P+4}:{P+7}], v4, s[4:7], s9 offen offset:1024")
    for i in range(8):
        b(f"buffer_load_dwordx4 v[{16+4*i}:{19+4*i}], v1, s[4:7], s8 offen")
        if i < 7: b(f"s_add_u32 s8, s8, {16*10240}")
    b(f"s_mul_i32 s11, s3, {CH}")
    b("v_and_b32 v5, 31, v0")
    b("v_lshrrev_b32 v6, 5, v0")
    b("v_lshlrev_b32 v7, 4, v5")
    b("v_sub_u32 v7, s11, v7")
    b("v_lshlrev_b32 v8, 3, v6")
    b("v_sub_u32 v8, v7, v8")
    b(f"v_add_u32 v8, {4088-512}, v8")
    b("v_lshlrev_b32 v9, 9, v6")
    b("v_sub_u32 v9, v7, v9")
    b("v_add_u32 v9, 3056, v9")
    b("v_lshlrev_b32 v10, 10, v6")
    b("v_sub_u32 v10, v7, v10")
    b("v_add_u32 v10, 1520, v10")
    b("s_mov_b32 s12, 0x05040100")
    b("s_mov_b32 s13, 0x05040302")
    b("s_mov_b32 s14, 0x07060100")
    b("s_mov_b32 s15, 0x07060302")
    b("v_and_b32 v11, 1, v0")
    b("v_cmp_eq_u32 vcc, 1, v11")
    b("v_mov_b32 v11, s13")
    b("v_mov_b32 v12, s15")
    b("v_cndmask_b32 v11, v11, v12, vcc")
    b("v_mov_b32 v12, s12")
    b("v_mov_b32 v13, s13")
    b("v_cndmask_b32 v12, v12, v13, vcc")
    b("v_mov_b32 v14, 0")
    b("v_mov_b32 v15, 0")
    b("v_lshl_add_u32 v13, v0, 3, s11")
    b(f"ds_write_b64 v13, v[14:15] offset:{UPAD}")
    b("v_lshl_add_u32 v13, v0, 2, s11")
    b(f"v_add_u32 v56, {V1O+4096}, v13")
    b(f"v_add_u32 v57, {4096-64}, v13")
    b(f"v_add_u32 v58, {UPAD}, v13")
    b("v_cmp_gt_u32 vcc, 16, v0")
    b("v_cndmask_b32 v57, v57, v56, vcc")
    b("v_cmp_gt_u32 vcc, 32, v0")
    b("v_cndmask_b32 v13, v58, v57, vcc")
    b(f"v_mul_u32_u24 v59, {CH}, v3")
    b("v_lshl_add_u32 v59, v2, 3, v59")
    b("s_lshl_b32 s16, s3, 10")
    b(f"s_add_u32 s16, s16, {UO}")
    b("v_add_u32 v59, s16, v59")
    b("s_waitcnt vmcnt(8)")
    b("v_cmp_eq_u32 vcc, 0, v0")
    b(f"v_and_b32 v56, 0xffff, v{P}")
    b("v_cndmask_b32 v56, 0, v56, vcc")
    b("ds_write_b32 v13, v56")
    def pk(dst, lo, hi):
        sel = {(0, 0): "s12", (1, 0): "s13", (0, 1): "s14", (1, 1): "s15"}[(lo & 1, hi & 1)]
        b(f"v_perm_b32 v{dst}, v{P+(hi>>1)}, v{P+(lo>>1)}, {sel}")
    T = 64
    pk(T, 3, 2); pk(T+1, 1, 0); pk(T+2, 4, 3); pk(T+3, 2, 1)
    b(f"ds_write_b64 v8, v[{T}:{T+1}] offset:512")
    b(f"ds_write_b64 v8, v[{T+2}:{T+3}] offset:{512+V1O}")
    T = 68
    pk(T, 7, 6); pk(T+1, 5, 5); pk(T+2, 7, 7); pk(T+3, 6, 5)
    b(f"ds_write_b64 v8, v[{T}:{T+1}]")
    b(f"ds_write_b64 v8, v[{T+2}:{T+3}] offset:{V1O}")
    T = 72
    pk(T, 10, 10); pk(T+1, 9, 9); pk(T+2, 9, 8); pk(T+3, 8, 8)
    pk(T+4, 10, 10); pk(T+5, 10, 9); pk(T+6, 9, 9); pk(T+7, 8, 8)
    b(f"ds_write_b128 v9, v[{T}:{T+3}]")
    b(f"ds_write_b128 v9, v[{T+4}:{T+7}] offset:{V1O}")
    for e in range(2):
        T = 80 + 8 * e; ga = 12 + 2 * e; gb = ga + 1; pr = P + 6 + e
        pk(T, gb, gb); b(f"v_perm_b32 v{T+1}, v{pr}, v{pr}, v11"); pk(T+2, ga, ga); pk(T+3, ga, ga)
        pk(T+4, gb, gb); pk(T+5, gb, gb); b(f"v_perm_b32 v{T+6}, v{pr}, v{pr}, v12"); pk(T+7, ga, ga)
        b(f"ds_write_b128 v10, v[{T}:{T+3}] offset:{512*(1-e)}")
        b(f"ds_write_b128 v10, v[{T+4}:{T+7}] offset:{512*(1-e)+V1O}")
    for i in range(8):
        b(f"s_waitcnt vmcnt({7-i})")
        b(f"ds_write_b64 v59, v[{16+4*i}:{17+4*i}] offset:{128*i}")
        b(f"ds_write_b64 v59, v[{18+4*i}:{19+4*i}] offset:{128*i+4096}")
    b("v_and_b32 v1, 15, v0")
    b("v_lshrrev_b32 v2, 4, v0")
    b("v_lshlrev_b32 v3, 4, v2")
    b("v_and_b32 v5, 1, v1")
    b("v_cmp_eq_u32 vcc, 0, v5")
    b(f"v_mov_b32 v5, {4*1027}")
    b(f"v_mov_b32 v6, {V1O+4*1028}")
    b("v_cndmask_b32 v5, v5, v6, vcc")
    b("v_lshrrev_b32 v6, 1, v1")
    b("v_lshlrev_b32 v6, 2, v6")
    b("v_sub_u32 v5, v5, v6")
    b("v_sub_u32 v5, v5, v3")
    b("v_add_u32 v5, s11, v5")
    for bp in range(4):
        b(f"v_subrev_u32 v{8+bp}, {512*(2*bp+1)+448}, v5")
    b("v_lshlrev_b32 v6, 5, v1")
    b("v_sub_u32 v12, v6, v3")
    b(f"s_add_u32 s16, s11, {UO-448+16}")
    b("v_add_u32 v12, s16, v12")
    b("v_lshl_add_u32 v13, v2, 3, v6")
    b(f"s_add_u32 s16, s11, {XO}")
    b("v_add_u32 v13, s16, v13")
    b("s_waitcnt lgkmcnt(0)")
    b("s_barrier")
    ACC = 16
    FB = [48, 112]
    XD = 176
    def loads(rho):
        fb = FB[rho & 1]; L = []
        for k in range(8):
            off = 128 * (1 - (k & 1)) + 16 * (7 - rho)
            L.append(f"ds_read2_b32 v[{fb+4*k}:{fb+4*k+1}], v{8+(k>>1)} offset0:{off} offset1:{off+1}")
            L.append(f"ds_read2_b32 v[{fb+4*k+2}:{fb+4*k+3}], v{8+(k>>1)} offset0:{off+2} offset1:{off+3}")
            L.append(f"ds_read_b128 v[{fb+32+4*k}:{fb+35+4*k}], v12 offset:{512*k+448-64*rho}")
        return L
    pairs = sorted([(bb, i) for bb in range(8) for i in range(8) if bb + i <= 7], key=lambda t: (max(t), t[0] + t[1]))
    for l in loads(0): b(l)
    for rho in range(8):
        fb = FB[rho & 1]
        side = loads(rho + 1) if rho < 7 else []
        if rho == 6: side = side + [f"ds_read_b64 v[{XD+2*c}:{XD+2*c+1}], v13 offset:{512*c}" for c in range(8)]
        if rho == 7:
            for k in range(16):
                side.append(f"v_lshlrev_b32 v{192+2*k}, 16, v{XD+k}")
                side.append(f"v_and_b32 v{193+2*k}, 0xffff0000, v{XD+k}")
        b("s_waitcnt lgkmcnt(0)")
        seen = set()
        for n, (bb, i) in enumerate(pairs):
            c = bb + i
            src = "0" if (rho == 0 and c not in seen) else v(ACC + 4 * c, 4)
            seen.add(c)
            b(f"v_mfma_f32_16x16x32_bf16 {v(ACC+4*c,4)}, {v(fb+4*bb,4)}, {v(fb+32+4*i,4)}, {src}")
            if n < len(side): b(side[n])
    b("v_lshrrev_b32 v1, 2, v0")
    b("v_and_b32 v1, 3, v1")
    b(f"v_mul_u32_u24 v1, {CH}, v1")
    b("v_and_b32 v3, 3, v0")
    b("v_lshl_add_u32 v1, v3, 3, v1")
    b("v_lshl_add_u32 v1, v2, 6, v1")
    b("s_lshl_b32 s16, s3, 10")
    b(f"s_add_u32 s16, s16, {XO}")
    b("v_add_u32 v1, s16, v1")
    b("s_lshl_b32 s16, s10, 14")
    b("s_lshl_b32 s17, s3, 12")
    b("s_add_u32 s16, s16, s17")
    b(f"s_add_u32 s16, s16, {H4_OFF}")
    for c in range(8):
        for e in range(2):
            r = ACC + 4 * c + 2 * e
            b(f"v_pk_add_f32 v[{r}:{r+1}], v[{r}:{r+1}], v[{192+4*c+2*e}:{193+4*c+2*e}]")
        for e in range(2):
            r = ACC + 4 * c + 2 * e
            b(f"v_cvt_pk_bf16_f32 v{XD+2*c+e}, v{r}, v{r+1}")
        b(f"ds_write_b64 v13, v[{XD+2*c}:{XD+2*c+1}] offset:{512*c}")
    b("s_waitcnt lgkmcnt(0)")
    b("s_barrier")
    for n in range(4):
        for k in range(2):
            b(f"ds_read_b64_tr_b16 v[{48+4*n+2*k}:{49+4*n+2*k}], v1 offset:{256*n+32*k}")
    for n in range(4):
        b(f"s_waitcnt lgkmcnt({6-2*n})")
        b(f"buffer_store_dwordx4 v[{48+4*n}:{51+4*n}], v4, s[4:7], s16 offen offset:{1024*n}")
    b("s_endpgm")
    b.label("L_pack")
    b("s_sub_u32 s8, s2, 160")
    b("s_lshl_b32 s8, s8, 2")
    b("s_add_u32 s8, s8, s3")
    b("s_cmp_ge_u32 s8, 270")
    b("s_cbranch_scc1 L_conv_end")
    assert all((t * 1214) >> 16 == t // 54 for t in range(270)) and all((t * 6554) >> 16 == t // 10 for t in range(270))
    b("s_mul_i32 s9, s8, 1214")
    b("s_lshr_b32 s9, s9, 16")
    b("s_mul_i32 s10, s9, 54")
    b("s_sub_u32 s10, s8, s10")
    b("s_mul_i32 s11, s8, 6554")
    b("s_lshr_b32 s11, s11, 16")
    b("s_mul_i32 s12, s11, 10")
    b("s_sub_u32 s12, s8, s12")
    b("v_lshrrev_b32 v1, 2, v0")
    b("v_and_b32 v2, 3, v0")
    b(f"v_mul_u32_u24 v3, {8*3456}, v1")
    b("v_lshl_add_u32 v3, v2, 4, v3")
    b("v_lshrrev_b32 v4, 5, v0")
    b("v_bfe_u32 v5, v0, 3, 2")
    b("v_and_b32 v6, 7, v0")
    b("v_lshlrev_b32 v7, 3, v4")
    b("v_add_u32 v7, v7, v5")
    b(f"v_mul_u32_u24 v7, {4*1280}, v7")
    b("v_lshl_add_u32 v7, v6, 4, v7")
    b(f"s_mul_i32 s13, s9, {128*3456}")
    b("s_lshl_b32 s14, s10, 6")
    b("s_add_u32 s13, s13, s14")
    b(f"s_mul_i32 s14, s11, {64*1280}")
    b("s_lshl_b32 s15, s12, 7")
    b("s_add_u32 s14, s14, s15")
    b("s_waitcnt lgkmcnt(0)")
    srd(b, 4, 26, WS_BYTES)
    srd(b, 32, 20, 640 * 1728 * 2)
    srd(b, 36, 22, 640 * 1728 * 2)
    for m in range(8):
        b(f"buffer_load_dwordx4 v[{16+4*m}:{19+4*m}], v3, s[32:35], s13 offen")
        b("s_add_u32 s13, s13, 3456")
    for m in range(8):
        if m == 4: b(f"s_add_u32 s14, s14, {16*1280}")
        b(f"buffer_load_dwordx4 v[{48+4*m}:{51+4*m}], v7, s[36:39], s14 offen offset:{1280*(m&3)}")
    b("s_mov_b32 s30, 0x05040100")
    b("s_mov_b32 s31, 0x07060302")
    b("v_lshrrev_b32 v8, 1, v2")
    b("v_mul_u32_u24 v8, 20480, v8")
    b("v_lshl_add_u32 v8, v1, 8, v8")
    b("v_and_b32 v9, 1, v2")
    b("v_lshl_add_u32 v8, v9, 7, v8")
    b("s_mul_i32 s13, s10, 40960")
    b("s_lshl_b32 s15, s9, 12")
    b("s_add_u32 s13, s13, s15")
    b(f"s_add_u32 s13, s13, {W1P_OFF}")
    b("v_lshrrev_b32 v9, 1, v6")
    b("v_mul_u32_u24 v9, 55296, v9")
    b("v_lshl_add_u32 v9, v4, 10, v9")
    b("v_lshl_add_u32 v9, v5, 8, v9")
    b("v_and_b32 v10, 1, v6")
    b("v_lshl_add_u32 v9, v10, 7, v9")
    b(f"s_mul_i32 s14, s12, {4*55296}")
    b("s_lshl_b32 s15, s11, 11")
    b("s_add_u32 s14, s14, s15")
    b(f"s_add_u32 s14, s14, {W2P_OFF}")
    def transpose(src, dst):
        for c in range(4):
            for e, sel in ((0, "s30"), (1, "s31")):
                for m in range(4):
                    b(f"v_perm_b32 v{dst+4*(2*c+e)+m}, v{src+4*(2*m+1)+c}, v{src+4*(2*m)+c}, {sel}")
    b("s_waitcnt vmcnt(8)")
    transpose(16, 80)
    for e in range(8):
        b(f"buffer_store_dwordx4 v[{80+4*e}:{83+4*e}], v8, s[4:7], s13 offen offset:{16*e}")
    for e in range(8): b(f"v_mov_b32 v{144+e}, 0")
    for m in range(4):
        for e in range(8):
            b(f"v_dot2c_f32_bf16 v{144+e}, 0x3f803f80, v{80+4*e+m}")
    for sh in (4, 8):
        for e in range(8):
            b(f"v_add_f32_dpp v{144+e}, v{144+e}, v{144+e} row_ror:{sh} row_mask:0xf bank_mask:0xf")
    for op in ("v_permlane16_swap_b32", "v_permlane32_swap_b32"):
        for e in range(8): b(f"v_mov_b32 v{152+e}, v{144+e}")
        for e in range(8): b(f"{op} v{144+e}, v{152+e}")
        for e in range(8): b(f"v_add_f32 v{144+e}, v{144+e}, v{152+e}")
    b("v_lshlrev_b32 v10, 5, v0")
    b("v_mov_b32 v11, 0x7fffffff")
    b("v_cmp_gt_u32 vcc, 4, v0")
    b("v_cndmask_b32 v10, v11, v10, vcc")
    b("s_lshl_b32 s15, s9, 13")
    b("s_lshl_b32 s16, s10, 7")
    b("s_add_u32 s15, s15, s16")
    b(f"s_add_u32 s15, s15, {CS_OFF}")
    b("buffer_store_dwordx4 v[144:147], v10, s[4:7], s15 offen")
    b("buffer_store_dwordx4 v[148:151], v10, s[4:7], s15 offen offset:16")
    b("s_waitcnt vmcnt(10)")
    transpose(48, 112)
    for e in range(8):
        b(f"buffer_store_dwordx4 v[{112+4*e}:{115+4*e}], v9, s[4:7], s14 offen offset:{16*e}")
    b.label("L_conv_end")
    return kernel("conv_kernel", b.text(), vgpr=224)

G1_CSL = 140 * 1024
G1_LDS = G1_CSL + 512
def gen_gemm1():
    b = B()
    b("s_cmp_ge_u32 s2, 256")
    b("s_cbranch_scc1 L_g1_end")
    b("s_load_dwordx2 s[26:27], s[0:1], 112")
    b("v_lshrrev_b32 v1, 6, v0")
    b("v_readfirstlane_b32 s3, v1")
    b("v_and_b32 v7, 127, v0")
    b("v_and_b32 v0, 63, v0")
    b("s_and_b32 s8, s2, 3")
    b("s_lshl_b32 s8, s8, 2")
    b("s_bfe_u32 s9, s2, 0x20003")
    b("s_add_u32 s8, s8, s9")
    b("s_bfe_u32 s9, s2, 0x10002")
    b("s_lshl_b32 s9, s9, 3")
    b("s_lshr_b32 s10, s2, 5")
    b("s_add_u32 s9, s9, s10")
    b("s_mul_i32 s10, s9, 7")
    b("s_lshl_b32 s11, s8, 2")
    b("s_add_u32 s11, s11, s3")
    b("v_and_b32 v1, 15, v0")
    b("v_lshrrev_b32 v2, 4, v0")
    b("v_lshlrev_b32 v3, 15, v2")
    b("v_lshl_add_u32 v3, v1, 4, v3")
    b("v_add_u32 v4, 16384, v3")
    b("v_lshlrev_b32 v5, 4, v0")
    b("s_lshl_b32 s12, s11, 8")
    b(f"s_add_u32 s12, s12, {H4_OFF}")
    b("s_mul_i32 s13, s10, 20480")
    b("s_lshl_b32 s14, s3, 10")
    b("s_add_u32 s13, s13, s14")
    b(f"s_add_u32 s13, s13, {W1P_OFF}")
    b("s_mul_i32 s14, s3, 7168")
    b("s_waitcnt lgkmcnt(0)")
    srd(b, 4, 26, WS_BYTES)
    ACT = 16
    ACC = 176
    ST = 232
    def issue(p):
        b("s_mov_b32 s15, s13")
        for f in range(7):
            b(f"s_add_u32 m0, s14, {f*1024}")
            b("buffer_load_dwordx4 v5, s[4:7], s15 offen lds")
            if f < 6: b("s_add_u32 s15, s15, 20480")
        b("s_add_u32 s13, s13, 4096")
        b(f"s_add_u32 s14, s14, {4*7168}")
        for k in range(4):
            ks = 4 * p + k
            b(f"buffer_load_dwordx4 {v(ACT+8*ks,4)}, v3, s[4:7], s12 offen")
            b(f"buffer_load_dwordx4 {v(ACT+8*ks+4,4)}, v4, s[4:7], s12 offen")
            b("s_add_u32 s12, s12, 131072")
    for p in range(4): issue(p)
    for k in range(4): b(f"v_mov_b32 v{ST+k}, 0")
    b("v_lshlrev_b32 v6, 2, v7")
    b("s_lshl_b32 s16, s10, 6")
    b(f"s_add_u32 s16, s16, {CS_OFF}")
    def wreads(ks):
        ab = 28 * (ks & 1)
        L = []
        for f in range(7):
            off = (ks * 7 + f) * 1024
            if off < 65536: L.append(f"ds_read_b128 {a(ab+4*f,4)}, v5 offset:{off}")
            elif off < 131072: L.append(f"ds_read_b128 {a(ab+4*f,4)}, v8 offset:{off-65536}")
            else: L.append(f"ds_read_b128 {a(ab+4*f,4)}, v9 offset:{off-131072}")
        return L
    b("v_add_u32 v8, 0x10000, v5")
    b("v_add_u32 v9, 0x20000, v5")
    waits = [45, 45, 35, 20, 0]
    for p in range(5):
        b(f"s_waitcnt vmcnt({waits[p]})")
        if p == 4:
            for k in range(1, 5): b(f"v_add_f32 v240, v240, v{240+k}")
            b(f"v_add_u32 v6, {G1_CSL}, v6")
            b("ds_write_b32 v6, v240")
            b("s_waitcnt lgkmcnt(0)")
        b("s_barrier")
        for l in wreads(4 * p): b(l)
        if p == 0: issue(4)
        if p == 1:
            for k in range(5):
                b(f"buffer_load_dword v{240+k}, v6, s[4:7], s16 offen")
                b("s_add_u32 s16, s16, 8192")
        for k in range(4):
            r = ACT + 8 * (4 * p + k)
            b(f"v_swap_b32 v{r+2}, v{r+4}")
            b(f"v_swap_b32 v{r+3}, v{r+5}")
        for k in range(4):
            ks = 4 * p + k; ab = 28 * (ks & 1); r = ACT + 8 * ks
            side = wreads(ks + 1) if k < 3 else []
            dots = []
            for m in range(4):
                for t in range(2):
                    dots.append(f"v_dot2c_f32_bf16 v{ST+t}, 0x3f803f80, v{r+4*t+m}")
                    dots.append(f"v_dot2c_f32_bf16 v{ST+2+t}, v{r+4*t+m}, v{r+4*t+m}")
            b("s_waitcnt lgkmcnt(0)")
            n = 0
            for f in range(7):
                for t in range(2):
                    acc = v(ACC + 4 * (7 * t + f), 4)
                    b(f"v_mfma_f32_16x16x32_bf16 {acc}, {a(ab+4*f,4)}, {v(r+4*t,4)}, {'0' if ks == 0 else acc}")
                    if n < len(side): b(side[n])
                    b(dots[n])
                    if n >= 12: b(dots[n + 2])
                    n += 1
    b("v_lshlrev_b32 v6, 4, v2")
    b(f"v_add_u32 v6, {G1_CSL}, v6")
    for f in range(7):
        b(f"ds_read_b128 {v(16+4*f,4)}, v6 offset:{64*f}")
    for op in ("v_permlane16_swap_b32", "v_permlane32_swap_b32"):
        for k in range(4): b(f"v_mov_b32 v{ST+4+k}, v{ST+k}")
        for k in range(4): b(f"{op} v{ST+k}, v{ST+4+k}")
        for k in range(4): b(f"v_add_f32 v{ST+k}, v{ST+k}, v{ST+4+k}")
    for t in range(2):
        ln_stats(b, ST + t, ST + 2 + t, 48 + 4 * t, 50 + 4 * t, 60, 61)
        b(f"v_mov_b32 v{49+4*t}, v{48+4*t}")
        b(f"v_mov_b32 v{51+4*t}, v{50+4*t}")
    b("s_mul_i32 s16, s11, 110592")
    b("s_lshr_b32 s17, s10, 1")
    b("s_lshl_b32 s17, s17, 10")
    b("s_add_u32 s16, s16, s17")
    b(f"s_add_u32 s16, s16, {H1F_OFF}")
    b("s_add_u32 s17, s16, 55296")
    b("s_waitcnt lgkmcnt(0)")
    O = 64
    for t in range(2):
        for f in range(7):
            for e in range(2):
                r = ACC + 4 * (7 * t + f) + 2 * e
                b(f"v_pk_fma_f32 v[{r}:{r+1}], v[{16+4*f+2*e}:{17+4*f+2*e}], v[{48+4*t}:{49+4*t}], v[{r}:{r+1}] neg_lo:[0,1,0] neg_hi:[0,1,0]")
            for e in range(2):
                r = ACC + 4 * (7 * t + f) + 2 * e
                b(f"v_pk_mul_f32 v[{r}:{r+1}], v[{r}:{r+1}], v[{50+4*t}:{51+4*t}]")
            for e in range(2):
                r = ACC + 4 * (7 * t + f) + 2 * e
                b(f"v_cvt_pk_bf16_f32 v{O+16*t+2*f+e}, v{r}, v{r+1}")
            for e in range(2):
                b(f"v_pk_max_i16 v{O+16*t+2*f+e}, v{O+16*t+2*f+e}, 0")
    b("s_bitcmp1_b32 s10, 0")
    b("s_cbranch_scc1 L_g1_odd")
    for t in range(2):
        o = O + 16 * t; so = f"s{16+t}"
        for q in range(3):
            b(f"buffer_store_dwordx4 {v(o+4*q,4)}, v5, s[4:7], {so} offen offset:{1024*q}")
        b(f"buffer_store_dwordx2 {v(o+12,2)}, v5, s[4:7], {so} offen offset:3072")
    b("s_endpgm")
    b.label("L_g1_odd")
    for t in range(2):
        o = O + 16 * t; so = f"s{16+t}"
        b(f"buffer_store_dwordx2 {v(o,2)}, v5, s[4:7], {so} offen offset:8")
        b(f"buffer_store_dwordx4 {v(o+2,4)}, v5, s[4:7], {so} offen offset:1024")
    b("s_cmp_eq_u32 s9, 15")
    b("s_cbranch_scc1 L_g1_end")
    for t in range(2):
        o = O + 16 * t; so = f"s{16+t}"
        for q in range(1, 3):
            b(f"buffer_store_dwordx4 {v(o+2+4*q,4)}, v5, s[4:7], {so} offen offset:{1024*(q+1)}")
    b.label("L_g1_end")
    return kernel("gemm1_kernel", b.text(), vgpr=248, accum=248, agpr=56)

G2_LDS = 60 * 1024
def gen_gemm2():
    b = B()
    b("s_cmp_ge_u32 s2, 256")
    b("s_cbranch_scc1 L_g2_end")
    b("s_load_dwordx2 s[26:27], s[0:1], 112")
    b("s_load_dwordx2 s[24:25], s[0:1], 96")
    b("v_lshrrev_b32 v1, 6, v0")
    b("v_readfirstlane_b32 s3, v1")
    b("v_and_b32 v0, 63, v0")
    b("s_and_b32 s8, s2, 3")
    b("s_lshl_b32 s8, s8, 3")
    b("s_bfe_u32 s9, s2, 0x30003")
    b("s_add_u32 s8, s8, s9")
    b("s_bfe_u32 s9, s2, 0x10002")
    b("s_lshl_b32 s9, s9, 2")
    b("s_lshr_b32 s10, s2, 6")
    b("s_add_u32 s9, s9, s10")
    b("v_lshlrev_b32 v5, 4, v0")
    for dl in range(5): b(f"v_add_u32 v{6+dl}, {dl*55296}, v5")
    for k in range(4):
        b(f"s_add_u32 s10, s3, {k}")
        b("s_and_b32 s10, s10, 3")
        b("s_mul_i32 s11, s10, 55296")
        b(f"v_add_u32 v{11+k}, s11, v5")
        if k:
            b(f"s_mul_i32 s11, s10, {15*1024}")
            b(f"s_add_u32 s11, s11, {(k-1)*5*1024}")
            b(f"v_add_u32 v{100+k}, s11, v5")
    b(f"s_mul_i32 s12, s8, {4*55296}")
    b("s_lshl_b32 s13, s3, 10")
    b("s_add_u32 s12, s12, s13")
    b(f"s_add_u32 s12, s12, {H1F_OFF}")
    b(f"s_mul_i32 s14, s9, {5*55296}")
    b("s_add_u32 s14, s14, s13")
    b(f"s_add_u32 s14, s14, {W2P_OFF}")
    b("s_waitcnt lgkmcnt(0)")
    srd(b, 4, 26, WS_BYTES)
    srd(b, 20, 24, 2048 * 1280)
    ACC = 16
    def issue(i):
        sl = 36 * (i % 7)
        if i == 13:
            b("s_cmp_lt_u32 s3, 2")
            b("s_cselect_b32 s12, s12, 0x70000000")
            b("s_cselect_b32 s14, s14, 0x70000000")
        order = [("W", 0), ("H", 0), ("W", 1), ("H", 1), ("W", 2), ("H", 2), ("W", 3), ("H", 3), ("W", 4)]
        for kind, k in order:
            if kind == "W": b(f"buffer_load_dwordx4 {a(sl+4*k,4)}, v{6+k}, s[4:7], s14 offen")
            else: b(f"buffer_load_dwordx4 {a(sl+20+4*k,4)}, v{11+k}, s[4:7], s12 offen")
        if i < 13:
            b("s_add_u32 s12, s12, 4096")
            b("s_add_u32 s14, s14, 4096")
    for i in range(7): issue(i)
    b("v_and_b32 v1, 15, v0")
    b("v_lshrrev_b32 v2, 4, v0")
    b("v_lshlrev_b32 v3, 14, v2")
    b("v_lshl_add_u32 v3, v1, 4, v3")
    b("s_lshl_b32 s15, s8, 2")
    b("s_add_u32 s15, s15, s3")
    b("s_lshr_b32 s16, s15, 1")
    b("s_lshl_b32 s16, s16, 8")
    b("s_and_b32 s17, s15, 1")
    b("s_lshl_b32 s17, s17, 3")
    b("s_add_u32 s16, s16, s17")
    b(f"s_mul_i32 s17, s9, {20*16384}")
    b("s_add_u32 s16, s16, s17")
    b(f"s_add_u32 s16, s16, {H4_OFF}")
    b("v_mul_u32_u24 v4, 1280, v1")
    b("v_lshl_add_u32 v4, v2, 3, v4")
    b(f"s_mul_i32 s18, s15, {16*1280}")
    b("s_mul_i32 s19, s9, 160")
    b("s_add_u32 s18, s18, s19")
    b(f"s_mul_i32 s19, s3, {15*1024}")
    b("v_add_u32 v100, s19, v5")
    waits = [54] * 8 + [50, 41, 32, 23, 14, 5]
    for i in range(14):
        sl = 36 * (i % 7)
        b(f"s_waitcnt vmcnt({waits[i]})")
        if i == 7:
            for dl in range(5):
                b(f"buffer_load_dwordx2 {v(104+2*dl,2)}, v3, s[4:7], s16 offen")
                if dl < 4: b("s_add_u32 s16, s16, 65536")
        for k in range(4):
            for dl in range(5):
                acc = v(ACC + 4 * (5 * k + dl), 4)
                b(f"v_mfma_f32_16x16x32_bf16 {acc}, {a(sl+4*dl,4)}, {a(sl+20+4*k,4)}, {'0' if i == 0 else acc}")
        if i < 7: issue(i + 7)
    for k in range(1, 4):
        for dl in range(5):
            b(f"ds_write_b128 v{100+k}, {v(ACC+4*(5*k+dl),4)} offset:{1024*dl}")
    b("s_waitcnt lgkmcnt(0)")
    b("s_barrier")
    R = 116
    for k in range(15):
        b(f"ds_read_b128 {v(R+4*k,4)}, v100 offset:{1024*k}")
    b("s_waitcnt vmcnt(0)")
    for dl in range(5):
        for e in range(2):
            b(f"v_lshlrev_b32 v{180+4*dl+2*e}, 16, v{104+2*dl+e}")
            b(f"v_and_b32 v{181+4*dl+2*e}, 0xffff0000, v{104+2*dl+e}")
    for dl in range(5):
        for e in range(2):
            r = ACC + 4 * dl + 2 * e
            b(f"v_pk_add_f32 v[{r}:{r+1}], v[{r}:{r+1}], v[{180+4*dl+2*e}:{181+4*dl+2*e}]")
    for s_ in range(3):
        b(f"s_waitcnt lgkmcnt({10-5*s_})")
        for dl in range(5):
            for e in range(2):
                r = ACC + 4 * dl + 2 * e; q = R + 4 * (5 * s_ + dl) + 2 * e
                b(f"v_pk_add_f32 v[{r}:{r+1}], v[{r}:{r+1}], v[{q}:{q+1}]")
    for dl in range(5):
        for e in range(2):
            r = ACC + 4 * dl + 2 * e
            b(f"v_cvt_pk_bf16_f32 v{104+2*dl+e}, v{r}, v{r+1}")
        b(f"buffer_store_dwordx2 {v(104+2*dl,2)}, v4, s[20:23], s18 offen offset:{32*dl}")
    b.label("L_g2_end")
    return kernel("gemm2_kernel", b.text(), vgpr=200, accum=200, agpr=252)

def main(path):
    hdr = open(f"cdna_kernels/{NAME}.s.ref").read().split("; Override launch")[0]
    txt = hdr
    txt += f"; @launch kernel=prep_kernel grid=(256,1,1) block=(320,1,1) lds={3*KG_LDS}\n"
    txt += f"; @launch kernel=conv_kernel grid=(228,1,1) block=(256,1,1) lds=83968\n"
    txt += f"; @launch kernel=gemm1_kernel grid=(256,1,1) block=(256,1,1) lds={G1_LDS}\n"
    txt += f"; @launch kernel=gemm2_kernel grid=(256,1,1) block=(256,1,1) lds={G2_LDS}\n"
    txt += '.amdgcn_target "amdgcn-amd-amdhsa--gfx950"\n'
    txt += gen_prep() + gen_conv() + gen_gemm1() + gen_gemm2()
    open(path, "w").write(txt)

if __name__ == "__main__":
    main(sys.argv[1] if len(sys.argv) > 1 else f"cdna_kernels/{NAME}.s")
```

```python
import sys
sys.path.insert(0, "dev")
from asmb import kernel
import gen as G
src = open(f"cdna_kernels/{G.NAME}.s").read()
for n in (2, 8):
    lines = src.split("\n")
    idx = max(i for i, l in enumerate(lines) if l.startswith("; @launch"))
    for k in range(n):
        lines.insert(idx + 1, "; @launch kernel=empty_kernel grid=(256,1,1) block=(256,1,1) lds=0")
    txt = "\n".join(lines) + kernel("empty_kernel", "", vgpr=8)
    open(f"var_empty{n}.s", "w").write(txt)
```

```python
import sys
sys.path.insert(0, "dev")
from asmb import kernel
src = open("v2.s").read()
st = """    s_load_dwordx2 s[4:5], s[0:1], 112
    s_memrealtime s[8:9]
    s_waitcnt lgkmcnt(0)
    s_and_b32 s5, s5, 0xffff
    s_mov_b32 s6, 0x10000000
    s_mov_b32 s7, 0x20000
    v_mov_b32 v1, s8
    v_mov_b32 v2, 0x6400000
    buffer_store_dword v1, v2, s[4:7], 0 offen
"""
def spin(T): return f"""    s_load_dwordx2 s[4:5], s[0:1], 112
    s_waitcnt lgkmcnt(0)
    s_add_u32 s4, s4, 0x6400000
    s_addc_u32 s5, s5, 0
    s_load_dword s6, s[4:5], 0
    s_waitcnt lgkmcnt(0)
    s_add_u32 s6, s6, {T}
    s_mov_b32 s10, 0
L_dspin:
    s_memrealtime s[8:9]
    s_add_u32 s10, s10, 1
    s_waitcnt lgkmcnt(0)
    s_cmp_gt_u32 s10, 100000
    s_cbranch_scc1 L_dout
    s_sub_u32 s7, s6, s8
    s_cmp_gt_i32 s7, 0
    s_cbranch_scc1 L_dspin
L_dout:
"""
for T in (6000, 8000):
    lines = src.split("\n")
    idx = [i for i, l in enumerate(lines) if l.startswith("; @launch")]
    lines.insert(idx[-1] + 1, "; @launch kernel=dspin_kernel grid=(1,1,1) block=(64,1,1) lds=0")
    lines.insert(idx[0], "; @launch kernel=dstamp_kernel grid=(1,1,1) block=(64,1,1) lds=0")
    txt = "\n".join(lines) + kernel("dstamp_kernel", st, vgpr=8) + kernel("dspin_kernel", spin(T), vgpr=8)
    open(f"diag{T}.s", "w").write(txt)
lines = src.split("\n")
idx = [i for i, l in enumerate(lines) if l.startswith("; @launch")]
dup = [lines[i] for i in idx]
lines[idx[-1] + 1:idx[-1] + 1] = dup
open("diag_dup.s", "w").write("\n".join(lines))
```

```python
import sys, struct
sys.path.insert(0, "dev")
from asmb import *

NAME = "sequential_preLN__ssm_conv_s4__dense_activation_relu__prompt"
VER = 2
U_OFF   = 0
XT_OFF  = U_OFF + 128 * 20480
GV_OFF  = XT_OFF + 128 * 20480
H4_OFF  = GV_OFF + 640 * 2048
W1P_OFF = H4_OFF + 160 * 16384
W2P_OFF = W1P_OFF + 16 * 143360
CS_OFF  = W2P_OFF + 8 * 4 * 70 * 1024
H1F_OFF = CS_OFF + 4 * 8192
FL2_OFF = H1F_OFF + 32 * 56 * 4096
FL3_OFF = FL2_OFF + 640 * 256
WS_END  = FL3_OFF + 256 * 512
WS_BYTES = 0x10000000
OOB = 0x7fffff00
SPIN_MAX = 200000

def f2u(x): return struct.unpack("<I", struct.pack("<f", x))[0]
LOG2E = f2u(1.4426950408889634)
INV2PI = f2u(0.15915494309189535)
K1_STF = ""

def srd(b, d, base, nbytes):
    b(f"s_mov_b32 s{d}, s{base}")
    b(f"s_and_b32 s{d+1}, s{base+1}, 0xffff")
    b(f"s_mov_b32 s{d+2}, {nbytes:#x}")
    b(f"s_mov_b32 s{d+3}, 0x20000")

STAMP = False
ST_OFF = 64 << 20
def stamp(b, k):
    if STAMP: b(f"s_memrealtime s[{64+2*k}:{65+2*k}]")
def stamp_flush(b, kid, nst):
    if not STAMP: return
    b("s_waitcnt vmcnt(0)")
    b(f"s_memrealtime s[{64+2*nst}:{65+2*nst}]")
    b("s_lshl_b32 s62, s2, 3")
    b("s_add_u32 s62, s62, s3")
    b("s_lshl_b32 s62, s62, 6")
    b(f"s_add_u32 s62, s62, {ST_OFF + kid * 256 * 8 * 64}")
    b("s_waitcnt lgkmcnt(0)")
    b("v_mov_b32 v0, 0")
    for k in range(nst + 1):
        b(f"v_mov_b32 v1, s{64+2*k}")
        b(f"buffer_store_dword v1, v0, s[4:7], s62 offen offset:{4*k}")

def csel(b, dst, x, y):
    b(f"s_mov_b32 {dst}, {y}")
    b(f"s_cselect_b32 {dst}, {x}, {dst}")

def interleave(*lists):
    out = []; idx = [0] * len(lists); tot = sum(len(l) for l in lists)
    for _ in range(tot):
        best = min((k for k in range(len(lists)) if idx[k] < len(lists[k])), key=lambda k: (idx[k] + 0.5) / len(lists[k]))
        out.append(lists[best][idx[best]]); idx[best] += 1
    return out

def ln_stats_ins(s1, s2, mb, rs, t0, t1):
    inv = f2u(1.0 / 640.0)
    return [
        f"v_mul_f32 v{t0}, {inv:#x}, v{s1}",
        f"v_mul_f32 v{t1}, {inv:#x}, v{s2}",
        f"v_fma_f32 v{t1}, -v{t0}, v{t0}, v{t1}",
        f"v_max_f32 v{t1}, 0, v{t1}",
        f"v_cvt_pk_bf16_f32 v{t0}, v{t0}, v{t1}",
        f"v_lshlrev_b32 v{mb}, 16, v{t0}",
        f"v_and_b32 v{t1}, 0xffff0000, v{t0}",
        f"v_add_f32 v{t1}, {f2u(1e-5):#x}, v{t1}",
        f"v_cvt_pk_bf16_f32 v{t1}, v{t1}, v{t1}",
        f"v_lshlrev_b32 v{t1}, 16, v{t1}",
        f"v_sqrt_f32 v{t1}, v{t1}",
        f"v_cvt_pk_bf16_f32 v{t1}, v{t1}, v{t1}",
        f"v_lshlrev_b32 v{t1}, 16, v{t1}",
        f"v_rcp_f32 v{rs}, v{t1}",
    ]

KG_ROW = 528
KG_LDS = 64 * KG_ROW
PK_LDS = 3 * KG_LDS
K1_LDS = PK_LDS + 3 * 7168
def slot_hi(vs, h):
    if vs <= 4: return 4 * h + vs
    if vs <= 7: return 256 + 4 * h + 2 * (vs - 5)
    if vs <= 10: return 512 + 256 * h + 4 * (vs - 8)
    if vs == 11: return None
    if vs <= 13: return 1024 + 512 * h + 8 * (vs - 12)
    return 1280 + 512 * h + 8 * (vs - 14)
XROWS = {}
for vs in range(16):
    for h in range(2):
        hi = slot_hi(vs, h)
        if hi is not None: XROWS.setdefault(hi, []).append(8 * (vs >> 2) + 4 * h + (vs & 3))

def step_tiles(i):
    if i < 8: return [(i >> 1, 2 * (i & 1)), (i >> 1, 2 * (i & 1) + 1)]
    if i < 12: return [(i - 8, 4), (i - 8, 5)]
    return [(2 * (i - 12), 6), (2 * (i - 12) + 1, 6)]
def lt_of(pos): return (pos + 6) % 7

def gen_kgen(b):
    b("s_mul_i32 s28, s2, 3")
    b("s_add_u32 s28, s28, s3")
    b("s_cmp_ge_u32 s28, 640")
    b("s_cbranch_scc1 L_prep_end")
    b("s_lshl_b32 s29, s28, 8")
    b("v_lshl_add_u32 v1, v0, 2, s29")
    b("s_lshl_b32 s30, s28, 1")
    b("v_mov_b32 v2, s30")
    b("s_waitcnt lgkmcnt(0)")
    stamp(b, 1)
    b("global_load_ushort v10, v2, s[22:23]")
    for k in range(6):
        b(f"global_load_dword v{4+k}, v1, s[{10+2*k}:{11+2*k}]")
    b("global_load_ushort v11, v2, s[24:25]")
    srd(b, 4, 26, WS_BYTES)
    b(f"s_mul_i32 s29, s3, {KG_LDS}")
    b("v_lshl_add_u32 v3, v0, 3, s29")
    b("v_and_b32 v60, 31, v0")
    b(f"v_mul_u32_u24 v60, {KG_ROW}, v60")
    b("v_lshrrev_b32 v61, 5, v0")
    b("v_lshl_add_u32 v60, v61, 4, v60")
    b("v_add_u32 v60, s29, v60")
    b(f"s_mov_b32 s30, {LOG2E:#x}")
    b(f"s_mov_b32 s31, {LOG2E:#x}")
    b(f"s_mov_b32 s32, {INV2PI:#x}")
    b(f"s_mov_b32 s33, {INV2PI:#x}")
    b("s_waitcnt vmcnt(7)")
    b("v_lshlrev_b32 v10, 16, v10")
    b("v_mul_f32 v10, s30, v10")
    b("v_exp_f32 v10, v10")
    b("v_cvt_pk_bf16_f32 v10, v10, v10")
    b("v_lshlrev_b32 v62, 16, v10")
    b("v_lshlrev_b32 v63, 16, v10")
    def unpack(dst, src):
        b(f"v_lshlrev_b32 v{dst}, 16, v{src}")
        b(f"v_and_b32 v{dst+1}, 0xffff0000, v{src}")
    A2, B2, CB = 12, 14, 16
    W1, W2, W4, W8, E256, E512, E1024 = 20, 24, 28, 32, 36, 40, 44
    b("s_waitcnt vmcnt(5)")
    unpack(A2, 4); unpack(B2, 5)
    b(f"v_pk_mul_f32 v[{A2}:{A2+1}], v[{A2}:{A2+1}], v[62:63]")
    b(f"v_pk_mul_f32 v[{B2}:{B2+1}], v[{B2}:{B2+1}], v[62:63]")
    b(f"v_pk_mul_f32 v[{A2}:{A2+1}], v[{A2}:{A2+1}], s[30:31]")
    b(f"v_pk_mul_f32 v[{B2}:{B2+1}], v[{B2}:{B2+1}], s[32:33]")
    def cexp(dst, m, t):
        mm = f2u(float(m))
        for e in range(2):
            if m == 1:
                b(f"v_exp_f32 v{t+e}, v{A2+e}")
                b(f"v_fract_f32 v{t+2+e}, v{B2+e}")
            else:
                b(f"v_mul_f32 v{t+e}, {mm:#x}, v{A2+e}")
                b(f"v_mul_f32 v{t+2+e}, {mm:#x}, v{B2+e}")
                b(f"v_exp_f32 v{t+e}, v{t+e}")
                b(f"v_fract_f32 v{t+2+e}, v{t+2+e}")
        for e in range(2):
            b(f"v_cos_f32 v{t+4+e}, v{t+2+e}")
            b(f"v_sin_f32 v{t+2+e}, v{t+2+e}")
        b(f"v_pk_mul_f32 v[{dst}:{dst+1}], v[{t}:{t+1}], v[{t+4}:{t+5}]")
        b(f"v_pk_mul_f32 v[{dst+2}:{dst+3}], v[{t}:{t+1}], v[{t+2}:{t+3}]")
    def cmul(dst, q, w, t):
        return [
            f"v_pk_mul_f32 v[{t}:{t+1}], v[{q}:{q+1}], v[{w}:{w+1}]",
            f"v_pk_mul_f32 v[{t+2}:{t+3}], v[{q}:{q+1}], v[{w+2}:{w+3}]",
            f"v_pk_fma_f32 v[{dst}:{dst+1}], v[{q+2}:{q+3}], v[{w+2}:{w+3}], v[{t}:{t+1}] neg_lo:[1,0,0] neg_hi:[1,0,0]",
            f"v_pk_fma_f32 v[{dst+2}:{dst+3}], v[{q+2}:{q+3}], v[{w}:{w+1}], v[{t+2}:{t+3}]",
        ]
    cexp(W8, 8, 48); cexp(W1, 1, 54); cexp(E256, 256, 48); cexp(E1024, 1024, 54)
    b("s_waitcnt vmcnt(1)")
    stamp(b, 2)
    unpack(48, 6); unpack(50, 7); unpack(52, 8); unpack(54, 9)
    b("v_pk_mul_f32 v[48:49], v[48:49], v[62:63]")
    b("v_pk_mul_f32 v[50:51], v[50:51], v[62:63]")
    for i in cmul(CB, 52, 48, 56): b(i)
    for i in cmul(W2, W1, W1, 48): b(i)
    for i in cmul(E512, E256, E256, 52): b(i)
    for i in cmul(W4, W2, W2, 48): b(i)
    b("v_mov_b32 v4, 0")
    b(f"s_mov_b32 s34, {FL2_OFF}")
    b("buffer_store_dword v4, v1, s[4:7], s34 offen")
    def emit(P, rows, neg, o):
        n = "-" if neg else ""
        r = [f"v_cvt_pk_bf16_f32 v{o}, v{P}, v{P+1}", f"v_cvt_pk_bf16_f32 v{o+1}, {n}v{P+2}, {n}v{P+3}"]
        for row in rows: r.append(f"ds_write_b64 v3, v[{o}:{o+1}] offset:{row*KG_ROW}")
        return r
    Y = ["v_mov_b32 v72, 0x3f803f80", "v_mov_b32 v73, 0", f"ds_write_b64 v3, v[72:73] offset:{32*KG_ROW}"]
    Y += emit(W8, [33], False, 74)
    cur = W8
    for j in range(2, 32):
        Y += cmul(64, cur, W8, 68); cur = 64
        Y += emit(64, [32 + j], False, 72 + 2 * (j & 1))
    X = []; cnt = [0]
    def xe(P, hi):
        o = 88 + 2 * (cnt[0] & 1); cnt[0] += 1
        return emit(P, XROWS[hi], True, o)
    X += xe(CB, 0)
    cur = CB
    for k in range(1, 9):
        X += cmul(76, cur, W1, 84); cur = 76; X += xe(76, k)
    X += cmul(76, CB, E256, 84); X += xe(76, 256)
    for k in range(1, 5):
        X += cmul(76, 76, W2, 84); X += xe(76, 256 + 2 * k)
    X += cmul(80, CB, E512, 84); X += xe(80, 512)
    X += cmul(76, 80, W4, 84); X += xe(76, 516)
    X += cmul(76, 76, W4, 84); X += xe(76, 520)
    X += cmul(80, 80, E256, 84); X += xe(80, 768)
    X += cmul(76, 80, W4, 84); X += xe(76, 772)
    X += cmul(76, 76, W4, 84); X += xe(76, 776)
    X += cmul(80, CB, E1024, 84)
    for k in range(4):
        if k: X += cmul(80, 80, E256, 84)
        X += xe(80, 1024 + 256 * k)
        X += cmul(76, 80, W8, 84); X += xe(76, 1024 + 256 * k + 8)
    for i in interleave(Y, X): b(i)
    stamp(b, 3)
    for s_ in range(16):
        b(f"ds_read_b128 v[{96+8*s_}:{99+8*s_}], v60 offset:{32*s_}")
        b(f"ds_read_b128 v[{100+8*s_}:{103+8*s_}], v60 offset:{32*KG_ROW+32*s_}")
        if s_ >= 4:
            k = s_ - 4
            b("s_waitcnt lgkmcnt(8)")
            b(f"v_mfma_f32_32x32x16_bf16 v[64:79], v[{96+8*k}:{99+8*k}], v[{100+8*k}:{103+8*k}], {'0' if k == 0 else 'v[64:79]'}")
    for k in range(12, 16):
        b(f"s_waitcnt lgkmcnt({2*(15-k)})")
        b(f"v_mfma_f32_32x32x16_bf16 v[64:79], v[{96+8*k}:{99+8*k}], v[{100+8*k}:{103+8*k}], v[64:79]")
    b("s_waitcnt vmcnt(1)")
    b("v_lshlrev_b32 v11, 16, v11")
    b("v_cmp_eq_u32 vcc, 0, v0")
    b("v_cndmask_b32 v11, 0, v11, vcc")
    b("v_lshlrev_b32 v2, 4, v0")
    b("s_lshl_b32 s29, s28, 11")
    b(f"s_add_u32 s29, s29, {GV_OFF}")
    b("v_add_f32 v64, v64, v11")
    stamp(b, 4)
    for m in range(8):
        b(f"v_cvt_pk_bf16_f32 v{80+m}, v{64+2*m}, v{65+2*m}")
    b(f"buffer_store_dwordx4 v[80:83], v2, s[4:7], s29 offen {K1_STF}")
    b(f"buffer_store_dwordx4 v[84:87], v2, s[4:7], s29 offen offset:1024 {K1_STF}")
    stamp_flush(b, 0, 5)
    b("s_endpgm")

def gen_ln(b):
    b("s_lshr_b32 s28, s2, 4")
    b("s_lshl_b32 s28, s28, 4")
    b("s_and_b32 s29, s2, 7")
    b("s_lshl_b32 s29, s29, 1")
    b("s_add_u32 s28, s28, s29")
    b("s_bfe_u32 s29, s2, 0x10003")
    b("s_add_u32 s28, s28, s29")
    b("s_lshl_b32 s28, s28, 1")
    b("s_add_u32 s28, s28, s3")
    b("s_sub_u32 s28, s28, 3")
    b("v_lshrrev_b32 v1, 4, v0")
    b("v_and_b32 v2, 15, v0")
    b("s_mul_i32 s29, s28, 5120")
    b("v_mul_u32_u24 v3, 1280, v1")
    b("v_lshl_add_u32 v3, v2, 4, v3")
    b("v_add_u32 v3, s29, v3")
    b("s_waitcnt lgkmcnt(0)")
    stamp(b, 1)
    XR = 8
    for i in range(5):
        b(f"global_load_dwordx4 v[{XR+4*i}:{XR+4*i+3}], v3, s[8:9] offset:{256*i}")
    srd(b, 4, 26, WS_BYTES)
    b("v_lshlrev_b32 v4, 8, v2")
    b("v_lshrrev_b32 v5, 1, v1")
    b("v_lshl_add_u32 v4, v5, 7, v4")
    b("v_and_b32 v5, 1, v1")
    b("v_lshl_add_u32 v4, v5, 4, v4")
    b("s_lshr_b32 s29, s28, 2")
    b("s_mul_i32 s29, s29, 20480")
    b("s_and_b32 s30, s28, 3")
    b("s_lshl_b32 s30, s30, 5")
    b("s_add_u32 s29, s29, s30")
    b(f"s_add_u32 s32, s29, {XT_OFF}")
    b("s_mov_b32 s30, 0x05040100")
    b("s_mov_b32 s31, 0x07060302")
    for k in range(4): b(f"v_mov_b32 v{60+k}, 0")
    b("v_lshlrev_b32 v5, 2, v0")
    b("s_lshl_b32 s33, s2, 1")
    b("s_add_u32 s33, s33, s3")
    b("s_lshl_b32 s33, s33, 8")
    b(f"s_add_u32 s33, s33, {FL3_OFF - 3 * 256}")
    b("buffer_store_dword v60, v5, s[4:7], s33 offen")
    def xpose(base, o, so):
        b(f"v_permlane32_swap_b32 v{base}, v{base+2}")
        b(f"v_permlane32_swap_b32 v{base+1}, v{base+3}")
        b(f"v_permlane16_swap_b32 v{base}, v{base+1}")
        b(f"v_permlane16_swap_b32 v{base+2}, v{base+3}")
        for e, sel in ((0, "s30"), (1, "s31")):
            b(f"v_perm_b32 v{o+2*e}, v{base+1}, v{base}, {sel}")
            b(f"v_perm_b32 v{o+2*e+1}, v{base+3}, v{base+2}, {sel}")
        b(f"buffer_store_dwordx4 v[{o}:{o+3}], v4, s[4:7], {so} offen {K1_STF}")
        b(f"s_add_u32 {so}, {so}, 4096")
    for i in range(5):
        b(f"s_waitcnt vmcnt({5-i})")
        for k in range(4):
            r = XR + 4 * i + k
            b(f"v_dot2c_f32_bf16 v{60+(k&1)}, 0x3f803f80, v{r}")
            b(f"v_dot2c_f32_bf16 v{62+(k&1)}, v{r}, v{r}")
    stamp(b, 2)
    b("v_add_f32 v60, v60, v61")
    b("v_add_f32 v62, v62, v63")
    for sh in (8, 4, 2, 1):
        b(f"v_add_f32_dpp v60, v60, v60 row_ror:{sh} row_mask:0xf bank_mask:0xf")
        b(f"v_add_f32_dpp v62, v62, v62 row_ror:{sh} row_mask:0xf bank_mask:0xf")
    for i in ln_stats_ins(60, 62, 64, 66, 68, 69): b(i)
    b("v_mov_b32 v65, v64")
    b("v_mov_b32 v67, v66")
    stamp(b, 3)
    UR = 32
    for i in range(5):
        ins = [[], [], [], []]
        for k in range(4):
            r = XR + 4 * i + k; t = 72 + 2 * k; u = UR + 4 * i + k
            ins[k] = [f"v_lshlrev_b32 v{t}, 16, v{r}", f"v_and_b32 v{t+1}, 0xffff0000, v{r}",
                      f"v_pk_add_f32 v[{t}:{t+1}], v[{t}:{t+1}], v[64:65] neg_lo:[0,1] neg_hi:[0,1]",
                      f"v_cvt_pk_bf16_f32 v{u}, v{t}, v{t+1}",
                      f"v_lshlrev_b32 v{t}, 16, v{u}", f"v_and_b32 v{t+1}, 0xffff0000, v{u}",
                      f"v_pk_mul_f32 v[{t}:{t+1}], v[{t}:{t+1}], v[66:67]",
                      f"v_cvt_pk_bf16_f32 v{u}, v{t}, v{t+1}"]
        for step in range(8):
            for k in range(4): b(ins[k][step])
        xpose(UR + 4 * i, 80 + 8 * (i & 1), "s29")
        xpose(XR + 4 * i, 84 + 8 * (i & 1), "s32")
    stamp(b, 4)
    stamp_flush(b, 0, 5)
    b("s_endpgm")

def gen_pack(b):
    b("s_load_dwordx4 s[36:39], s[0:1], 80")
    b("s_lshr_b32 s28, s2, 3")
    b("s_mul_i32 s28, s28, 3")
    b("s_add_u32 s28, s28, s3")
    b("s_sub_u32 s28, s28, 5")
    b("s_and_b32 s29, s2, 7")
    b("s_sub_u32 s30, s3, 5")
    b("s_mul_i32 s30, s30, 7168")
    b(f"s_add_u32 s30, s30, {PK_LDS}")
    b("v_lshrrev_b32 v1, 1, v0")
    b("v_and_b32 v2, 1, v0")
    b("v_lshlrev_b32 v5, 4, v0")
    b("v_lshrrev_b32 v6, 4, v0")
    b("v_and_b32 v7, 15, v0")
    b("v_lshlrev_b32 v8, 8, v6")
    b("v_lshl_add_u32 v8, v7, 3, v8")
    b("v_add_u32 v8, s30, v8")
    b("s_cmp_ge_u32 s28, 56")
    b("s_cbranch_scc1 L_pack2")
    assert all((t * 4682) >> 16 == t // 14 for t in range(56))
    b("s_mul_i32 s31, s28, 4682")
    b("s_lshr_b32 s31, s31, 16")
    b("s_mul_i32 s32, s31, 14")
    b("s_sub_u32 s32, s28, s32")
    b("s_lshl_b32 s33, s29, 1")
    b("s_sub_u32 s34, s32, 7")
    b("s_cmp_ge_u32 s32, 7")
    b("s_cselect_b32 s32, s34, s32")
    b("s_addc_u32 s33, s33, 0")
    b("s_add_u32 s34, s32, 1")
    b("s_cmp_eq_u32 s32, 6")
    b("s_cselect_b32 s34, 0, s34")
    b("s_cselect_b32 s35, 12, 64")
    b("v_mul_u32_u24 v3, 3456, v1")
    b("v_lshl_add_u32 v3, v2, 4, v3")
    b(f"s_mul_i32 s40, s31, {160*3456}")
    b("s_mul_i32 s41, s33, 216")
    b("s_add_u32 s40, s40, s41")
    b("s_lshl_b32 s41, s32, 5")
    b("s_add_u32 s40, s40, s41")
    b("s_waitcnt lgkmcnt(0)")
    stamp(b, 1)
    srd(b, 44, 36, 640 * 1728 * 2)
    for m in range(5):
        b(f"s_add_u32 m0, s30, {m*1024}")
        b("buffer_load_dwordx4 v3, s[44:47], s40 offen lds")
        b(f"s_add_u32 s40, s40, {32*3456}")
    srd(b, 4, 26, WS_BYTES)
    b("s_mul_i32 s40, s33, 143360")
    b("s_lshl_b32 s41, s34, 10")
    b("s_add_u32 s40, s40, s41")
    b("s_cmp_lt_u32 s34, 4")
    csel(b, "s41", 4096, 3072)
    csel(b, "s42", W1P_OFF, W1P_OFF + 81920 - 4096)
    b("s_add_u32 s40, s40, s42")
    b("s_mul_i32 s42, s41, s31")
    b("s_mul_i32 s42, s42, 5")
    b("s_add_u32 s40, s40, s42")
    b("v_cmp_eq_u32 vcc, 12, v7")
    b("v_mov_b32 v9, 0x3f803f80")
    b("v_cndmask_b32 v9, 0, v9, vcc")
    b("v_cmp_le_u32 vcc, s35, v7")
    b("v_mov_b32 v10, 0")
    b("v_mov_b32 v11, 0")
    b("s_waitcnt vmcnt(0)")
    stamp(b, 2)
    for m in range(5):
        b(f"ds_read_b64_tr_b16 v[{16+4*m}:{17+4*m}], v8 offset:{1024*m}")
        b(f"ds_read_b64_tr_b16 v[{18+4*m}:{19+4*m}], v8 offset:{1024*m+128}")
    for m in range(5):
        b(f"s_waitcnt lgkmcnt({8-2*m})")
        for k in range(4): b(f"v_cndmask_b32 v{16+4*m+k}, v{16+4*m+k}, v9, vcc")
        b(f"buffer_store_dwordx4 v[{16+4*m}:{19+4*m}], v5, s[4:7], s40 offen {K1_STF}")
        b("s_add_u32 s40, s40, s41")
        for k in range(4): b(f"v_dot2c_f32_bf16 v{10+(k&1)}, 0x3f803f80, v{16+4*m+k}")
    b("v_add_f32 v10, v10, v11")
    for op in ("v_permlane16_swap_b32", "v_permlane32_swap_b32"):
        b("v_mov_b32 v11, v10")
        b(f"{op} v10, v11")
        b("v_add_f32 v10, v10, v11")
    b("v_lshlrev_b32 v7, 2, v7")
    b("s_lshl_b32 s40, s31, 13")
    b("s_mul_i32 s41, s33, 448")
    b("s_add_u32 s40, s40, s41")
    b("s_lshl_b32 s41, s34, 6")
    b("s_add_u32 s40, s40, s41")
    b(f"s_add_u32 s40, s40, {CS_OFF}")
    b("buffer_store_dword v10, v7, s[4:7], s40 offen")
    stamp(b, 3); stamp(b, 4)
    stamp_flush(b, 0, 5)
    b("s_endpgm")
    b.label("L_pack2")
    b("s_sub_u32 s28, s28, 56")
    assert all((t * 13108) >> 16 == t // 5 for t in range(40))
    b("s_mul_i32 s31, s28, 13108")
    b("s_lshr_b32 s31, s31, 16")
    b("s_mul_i32 s32, s31, 5")
    b("s_sub_u32 s32, s28, s32")
    b("s_lshr_b32 s33, s31, 1")
    b("v_and_b32 v3, 3, v1")
    b("v_lshl_add_u32 v3, v6, 2, v3")
    b("v_mul_u32_u24 v3, 1280, v3")
    b("v_lshl_add_u32 v3, v2, 4, v3")
    b("v_bfe_u32 v4, v1, 2, 1")
    b("v_lshl_add_u32 v9, v4, 2, v6")
    b("s_and_b32 s34, s31, 1")
    b("s_cmp_eq_u32 s34, 0")
    b("s_cselect_b32 s35, 3, 99")
    b("v_cmp_eq_u32 vcc, s35, v9")
    b(f"v_mov_b32 v9, {OOB:#x}")
    b("v_cndmask_b32 v9, v3, v9, vcc")
    b("v_cmp_eq_u32 vcc, 1, v4")
    b(f"s_mul_i32 s40, s33, {432*1280}")
    b("s_mul_i32 s41, s29, 160")
    b("s_add_u32 s40, s40, s41")
    b("s_lshl_b32 s41, s32, 5")
    b("s_add_u32 s40, s40, s41")
    b("s_waitcnt lgkmcnt(0)")
    stamp(b, 1)
    srd(b, 44, 38, 640 * 1728 * 2)
    for m in range(7):
        offs = []
        for par in range(2):
            tl = step_tiles(7 * par + m)
            offs.append([(108 * cgl + 16 * lt_of(pos)) * 1280 for cgl, pos in tl])
        b("s_cmp_eq_u32 s34, 0")
        csel(b, "s42", offs[0][0], offs[1][0])
        csel(b, "s43", offs[0][1], offs[1][1])
        b("v_mov_b32 v10, s42")
        b("v_mov_b32 v11, s43")
        b("v_cndmask_b32 v10, v10, v11, vcc")
        b(f"v_add_u32 v10, v10, v{9 if m % 2 == 0 else 3}")
        b(f"s_add_u32 m0, s30, {m*1024}")
        b("buffer_load_dwordx4 v10, s[44:47], s40 offen lds")
    srd(b, 4, 26, WS_BYTES)
    b("s_lshl_b32 s40, s29, 2")
    b("s_add_u32 s40, s40, s33")
    b("s_mul_i32 s40, s40, 70")
    b("s_mul_i32 s41, s34, 35")
    b("s_add_u32 s40, s40, s41")
    b("s_add_u32 s40, s40, s32")
    b("s_lshl_b32 s40, s40, 10")
    b(f"s_add_u32 s40, s40, {W2P_OFF}")
    b("s_waitcnt vmcnt(0)")
    stamp(b, 2)
    for m in range(7):
        b(f"ds_read_b64_tr_b16 v[{16+4*m}:{17+4*m}], v8 offset:{1024*m}")
        b(f"ds_read_b64_tr_b16 v[{18+4*m}:{19+4*m}], v8 offset:{1024*m+128}")
    for m in range(7):
        b(f"s_waitcnt lgkmcnt({12-2*m})")
        b(f"buffer_store_dwordx4 v[{16+4*m}:{19+4*m}], v5, s[4:7], s40 offen {K1_STF}")
        b("s_add_u32 s40, s40, 5120")
    stamp(b, 3); stamp(b, 4)
    stamp_flush(b, 0, 5)

def gen_prep():
    b = B()
    b("s_cmp_ge_u32 s2, 256")
    b("s_cbranch_scc1 L_prep_end")
    stamp(b, 0)
    b("s_load_dwordx16 s[8:23], s[0:1], 0")
    b("s_load_dwordx2 s[24:25], s[0:1], 64")
    b("s_load_dwordx2 s[26:27], s[0:1], 112")
    b("v_lshrrev_b32 v1, 6, v0")
    b("v_readfirstlane_b32 s3, v1")
    b("v_and_b32 v0, 63, v0")
    b("s_cmp_ge_u32 s3, 5")
    b("s_cbranch_scc1 L_pack")
    b("s_cmp_ge_u32 s3, 3")
    b("s_cbranch_scc1 L_ln")
    gen_kgen(b)
    b.label("L_ln")
    gen_ln(b)
    b.label("L_pack")
    gen_pack(b)
    b.label("L_prep_end")
    return kernel("prep_kernel", b.text(), vgpr=224, sgpr=100)

exec(open("gen2_mega.py").read())

def main(path):
    hdr = open(f"cdna_kernels/{NAME}.s.ref").read().split("; Override launch")[0]
    txt = hdr
    txt += f"; @launch kernel=prep_kernel grid=(256,1,1) block=(512,1,1) lds={K1_LDS}\n"
    txt += f"; @launch kernel=mega_kernel grid=(256,1,1) block=(256,1,1) lds={M_LDS}\n"
    txt += '.amdgcn_target "amdgcn-amd-amdhsa--gfx950"\n'
    txt += gen_prep() + gen_mega()
    open(path, "w").write(txt)

if __name__ == "__main__":
    if "--stamp" in sys.argv:
        STAMP = True; sys.argv.remove("--stamp")
    main(sys.argv[1] if len(sys.argv) > 1 else f"cdna_kernels/{NAME}.s")
```

```python
import sys
sys.path.insert(0, "dev")
import gen2 as G
from asmb import *
T = int(sys.argv[2]) if len(sys.argv) > 2 else 0
G.K1_STF = "sc1"
prep = G.gen_prep(); mega = G.gen_mega()
def body(k, name):
    s = k[k.index(name + ":\n") + len(name) + 2:]
    return s[:s.index(".section .rodata")]
pb = body(prep, "prep_kernel"); mb = body(mega, "mega_kernel")
pb = pb.replace("    s_endpgm\n", "    s_branch L_next\n")
pb = pb.replace("    s_cmp_ge_u32 s2, 256\n    s_cbranch_scc1 L_prep_end\n", "    s_cmp_ge_u32 s2, 256\n    s_cbranch_scc1 L_m_end\n    s_memrealtime s[96:97]\n", 1)
pb = pb.replace("    v_and_b32 v0, 63, v0\n", "    v_and_b32 v0, 63, v0\n    s_mov_b32 s59, s3\nL_role:\n", 1)
import re
pb = re.sub(r"(buffer_store_dword v\d+, v\d+, s\[4:7\], s\d+ offen)\n", r"\1 sc1\n", pb)
nxt = """L_next:
    s_waitcnt vmcnt(0) lgkmcnt(0)
    s_cmp_ge_u32 s3, 4
    s_cbranch_scc1 L_gb
    s_add_u32 s3, s3, 4
    s_branch L_role
L_gb:
    s_load_dwordx2 s[4:5], s[0:1], 104
    s_barrier
    s_waitcnt lgkmcnt(0)
    s_and_b32 s5, s5, 0xffff
    s_mov_b32 s6, 256
    s_mov_b32 s7, 0x20000
    s_cmp_lg_u32 s59, 0
    s_cbranch_scc1 L_gb2
    v_mov_b32 v1, 1
    v_mov_b32 v2, 0
    s_mov_b64 exec, 1
    buffer_atomic_add v1, v2, s[4:7], 0 offen sc1
    s_mov_b64 exec, -1
    s_mov_b32 s58, 0
L_gbs:
    s_sleep 2
    buffer_load_dword v1, v2, s[4:7], 0 offen sc1
    s_add_u32 s58, s58, 1
    s_waitcnt vmcnt(0)
    v_readfirstlane_b32 s57, v1
    s_cmp_gt_u32 s58, 200000
    s_cbranch_scc1 L_gb2
    s_cmp_lt_u32 s57, 256
    s_cbranch_scc1 L_gbs
L_gb2:
    s_barrier
    s_lshl_b32 s57, s59, 6
    v_add_u32 v0, s57, v0
"""
if T:
    tail = f"""    s_add_u32 s96, s96, {T}
    s_mov_b32 s58, 0
L_dspin:
    s_memrealtime s[98:99]
    s_add_u32 s58, s58, 1
    s_waitcnt lgkmcnt(0)
    s_cmp_gt_u32 s58, 100000
    s_cbranch_scc1 L_m_end
    s_sub_u32 s57, s96, s98
    s_cmp_gt_i32 s57, 0
    s_cbranch_scc1 L_dspin
L_m_end:
"""
    mb = mb.replace("L_m_end:\n", tail)
mb = mb.replace("    s_endpgm\n", "")
hdr = open(f"cdna_kernels/{G.NAME}.s.ref").read().split("; Override launch")[0]
txt = hdr + f"; @launch grid=(256,1,1) block=(256,1,1) lds={G.M_LDS}\n" + '.amdgcn_target "amdgcn-amd-amdhsa--gfx950"\n'
txt += kernel(G.NAME + "_kernel", pb + nxt + mb, vgpr=256, accum=256, agpr=256, sgpr=102)
open(sys.argv[1], "w").write(txt)
```
